```python
import torch

def _softmax(x, axis=-1):
    return torch.softmax(x, dim=axis)
def _gelu(x):
    return torch.nn.functional.gelu(x, approximate="tanh")
def _silu(x):
    return torch.nn.functional.silu(x)
def _sigmoid(x):
    return torch.sigmoid(x)
def _layernorm(x, axis=-1, eps=1e-5):
    m = x.mean(dim=axis, keepdim=True)
    v = x.var(dim=axis, keepdim=True, unbiased=False)
    return (x - m) / torch.sqrt(v + eps)
def _scatter_add(tgt, idx, src, axis=0):
    return tgt.clone().index_add_(axis, idx, src)
def _segment_sum(src, seg, n):
    out = torch.zeros((n,) + src.shape[1:], dtype=src.dtype)
    return out.index_add_(0, seg, src)
def _pad(x, pw):
    flat = tuple(v for pair in reversed(pw) for v in pair)
    return torch.nn.functional.pad(x, flat)

kernel_name = 'standalone__winograd__vision'

def setup_inputs():

    _w = (lambda a: (lambda t: t.to(torch.bfloat16) if t.is_floating_point() else t)(torch.as_tensor(a)))
    H = W = 384 // 2 * 2
    C = 96
    return {
        "x": _w((lambda *s: torch.randn(*s, dtype=torch.bfloat16) * 0.05)(1, H, W, C)),
        "w": _w((lambda *s: torch.randn(*s, dtype=torch.bfloat16) * 0.05)(3, 3, C, C)),
    }

def reference(x, w):
    N, H, W, C = x.shape
    K = w.shape[-1]
    G  = torch.as_tensor([[1.0,0.0,0.0],[0.5,0.5,0.5],[0.5,-0.5,0.5],[0.0,0.0,1.0]], dtype=x.dtype)
    Bt = torch.as_tensor([[1.0,0.0,-1.0,0.0],[0.0,1.0,1.0,0.0],[0.0,-1.0,1.0,0.0],[0.0,1.0,0.0,-1.0]], dtype=x.dtype)
    At = torch.as_tensor([[1.0,1.0,1.0,0.0],[0.0,1.0,-1.0,-1.0]], dtype=x.dtype)
    U = torch.einsum("ar,rsck,bs->abck", G, w, G)
    xp = _pad(x, ((0,0),(1,1),(1,1),(0,0)))
    nH, nW = H // 2, W // 2
    patches = []
    for i in range(4):
        for j in range(4):
            patches.append(xp[:, i:i + 2 * nH:2, j:j + 2 * nW:2, :])
    d = torch.stack(patches).reshape(4, 4, N * nH * nW, C)
    V = torch.einsum("ai,ijpc,bj->abpc", Bt, d, Bt)
    M = torch.einsum("abck,abpc->abpk", U, V)
    Y = torch.einsum("ma,abpk,nb->pmnk", At, M, At)
    Y = Y.reshape(N, nH, nW, 2, 2, K)
    Y = (lambda x, *d: x.permute(*d))(Y, 0, 1, 3, 2, 4, 5).reshape(N, H, W, K)
    return Y
```

```python
class Emitter:
    def __init__(self):
        self.lines = []
        self.lds_issued = 0
        self.lds_done = 0
        self.vm_issued = 0
        self.vm_done = 0
    def raw(self, s):
        for l in s.split('\n'):
            self.lines.append(l)
    def __call__(self, s):
        self.raw(s)
    def lds(self, s):
        self.raw(s); self.lds_issued += 1; return self.lds_issued
    def vm(self, s):
        self.raw(s); self.vm_issued += 1; return self.vm_issued
    def need(self, lds=None, vm=None, force=False):
        parts = []
        if vm is not None and vm > self.vm_done:
            n = self.vm_issued - vm
            assert n <= 63
            parts.append(f'vmcnt({n})'); self.vm_done = vm
        if lds is not None and lds > self.lds_done:
            n = self.lds_issued - lds
            if n > 15: n = 15
            parts.append(f'lgkmcnt({n})'); self.lds_done = self.lds_issued - n
        if parts:
            self.raw('s_waitcnt ' + ' '.join(parts)); return True
        return False
    def text(self):
        return '\n'.join(self.lines) + '\n'

def vr(b, n=1, p='v'):
    return f'{p}{b}' if n == 1 else f'{p}[{b}:{b+n-1}]'
```

```python
import sys
from asmlib import *

STAMP = 'stamp' in sys.argv
KN = 'standalone__winograd__vision_kernel'
ROWB = 73728
TAPB = 18432
XB = 28311552
BIG = 0x40000000
PITCH = 9600
W = [TAPB * i for i in range(6)]
A = [110592 + PITCH * i for i in range(5)]
row_slot = {0: A[0], 6: A[1], 1: A[2], 7: A[3], 2: A[4], 8: A[0],
            3: 55296, 9: 55296 + PITCH, 4: 55296 + 2 * PITCH, 10: 55296 + 3 * PITCH, 5: 55296 + 4 * PITCH,
            11: A[2], 12: 0, 13: PITCH}
tap_slot = {t: W[t % 6] for t in range(9)}
LDS = 158592

vLANE = 0
vB0 = 1
vB = 4
vRW = 7
vWW = 12
vT0 = 13
vT = 15
vS4 = 17; vS2 = 18
vTMP = 19
vCV = 20
vF = 28
NS = 13
vACC = vF + 4 * NS
vWT = vACC + 108
assert vWT + 68 == 256
def wreg(t, k, j):
    f = (t * 3 + k) * 3 + j
    if f < 64: return ('a', 4 * f)
    return ('v', vWT + 4 * (f - 64))
def acc(o, b, j):
    return vACC + ((o % 3) * 9 + b * 3 + j) * 4
sX, sWp, sO, sWS = 12, 16, 20, 24
sWAVE, sGRP, sH, sROW, sT0, sT1 = 28, 29, 30, 31, 32, 33
sMROW, sMHALF, sOUT = 34, 36, 38
sWV4608, sW5120 = 39, 40
sTX, sTY = 41, 42
sST = 44

e = Emitter()
nstamp = [0]
def stamp():
    if STAMP:
        e(f's_memrealtime s[{sST+2*nstamp[0]}:{sST+2*nstamp[0]+1}]'); nstamp[0] += 1

hdr = open('standalone__winograd__vision.s.ref').read().split('; Override')[0]
e(hdr.rstrip())
e(f'; @launch grid=(256,1,1) block=(256,1,1) lds={LDS}')
e('.amdgcn_target "amdgcn-amd-amdhsa--gfx950"')
e(f'.text\n.globl {KN}\n.p2align 8\n.type {KN},@function\n{KN}:')
e('s_cmp_ge_u32 s2, 256\ns_cbranch_scc1 Lend')
stamp()
e('s_load_dwordx4 s[4:7], s[0:1], 0')
e('s_load_dwordx2 s[8:9], s[0:1], 16')
if STAMP: e('s_load_dwordx2 s[10:11], s[0:1], 32')
e(f'v_lshrrev_b32 v{vTMP}, 6, v0')
e(f'v_and_b32 v0, 63, v0')
e(f'v_readfirstlane_b32 s{sWAVE}, v{vTMP}')
e(f's_and_b32 s{sT0}, s2, 7')
e(f's_lshr_b32 s{sT1}, s2, 3')
e(f's_and_b32 s{sTX}, s{sT1}, 7')
e(f's_lshr_b32 s{sT1}, s{sT1}, 3')
e(f's_lshl_b32 s{sT0}, s{sT0}, 2')
e(f's_add_u32 s{sTY}, s{sT0}, s{sT1}')
e(f's_lshr_b32 s{sGRP}, s{sWAVE}, 1')
e(f's_and_b32 s{sH}, s{sWAVE}, 1')
e(f's_mul_i32 s{sWV4608}, s{sWAVE}, 4608')
e(f's_mul_i32 s{sW5120}, s{sH}, 5120')
e(f'v_lshlrev_b32 v{vWW}, 4, v0')
e(f'v_add_u32 v{vWW}, s{sWV4608}, v{vWW}')
e(f's_mov_b32 s{sMHALF}, -1\ns_mov_b32 s{sMHALF+1}, 0')
e(f's_mov_b32 s{sWp+2}, {9*TAPB}\ns_mov_b32 s{sWp+3}, 0x20000')
e('s_waitcnt lgkmcnt(0)')
e(f's_mov_b32 s{sWp}, s6\ns_mov_b32 s{sWp+1}, s7')

def selg(d, a, b):
    e(f's_mul_i32 s{d}, s{sGRP}, {b-a}')
    e(f's_add_u32 s{d}, s{d}, {a}')
def dma_tap(t):
    items = []
    def head():
        e(f's_add_u32 m0, s{sWV4608}, {tap_slot[t]}')
        e(f's_mov_b32 s{sT0}, {t*TAPB}')
    items.append((8, head))
    for i in range(4):
        items.append((8, lambda i=i: e.vm(f'buffer_load_dwordx4 v{vWW}, s[{sWp}:{sWp+3}], s{sT0} offen offset:{1024*i} lds')))
    def mid():
        e(f's_add_u32 m0, m0, 4096')
        e(f's_add_u32 s{sT0}, s{sT0}, 4096')
    items.append((8, mid))
    def last():
        e(f's_mov_b64 exec, s[{sMHALF}:{sMHALF+1}]')
        tok = e.vm(f'buffer_load_dwordx4 v{vWW}, s[{sWp}:{sWp+3}], s{sT0} offen lds')
        e('s_mov_b64 exec, -1')
        return tok
    items.append((16, last))
    return items

def run(items):
    tok = None
    for c, f in items:
        r = f()
        if r is not None: tok = r
    return tok

tok_tap = {}
tok_tap[0] = run(dma_tap(0))

e(f's_sub_u32 s{sX}, s4, 192\ns_subb_u32 s{sX+1}, s5, 0\ns_mov_b32 s{sX+2}, {XB+192}\ns_mov_b32 s{sX+3}, 0x20000')
e(f's_mov_b32 s{sO}, s8\ns_mov_b32 s{sO+1}, s9\ns_mov_b32 s{sO+2}, {XB}\ns_mov_b32 s{sO+3}, 0x20000')
if STAMP: e(f's_mov_b32 s{sWS}, s10\ns_mov_b32 s{sWS+1}, s11\ns_mov_b32 s{sWS+2}, 0x1000000\ns_mov_b32 s{sWS+3}, 0x20000')
e(f's_mul_i32 s{sOUT}, s{sTY}, {12*ROWB}')
e(f's_mul_i32 s{sT0}, s{sGRP}, {6*ROWB}')
e(f's_add_u32 s{sOUT}, s{sOUT}, s{sT0}')
e(f's_mul_i32 s{sT0}, s{sTX}, {48*192}')
e(f's_add_u32 s{sOUT}, s{sOUT}, s{sT0}')
e(f's_sub_u32 s{sROW}, s{sOUT}, {ROWB}')
e(f's_cmp_eq_u32 s{sH}, 0')
e(f's_cselect_b32 s{sMROW}, -1, 0xffffff')
e(f's_cselect_b32 s{sMROW+1}, -1, 0')
e(f's_mul_i32 s{sT0}, s{sH}, 320')
e(f's_cmp_eq_u32 s{sTX}, 0\ns_cselect_b32 s{sT1}, 12, 0')
e(f's_cmp_eq_u32 s{sTX}, 7\ns_cselect_b32 s3, 588, -1')
e(f's_mov_b32 s4, 1366\ns_mov_b32 s5, {BIG}')
for i in range(5):
    q = vRW + i
    e(f'v_add_u32 v{q}, s{sT0}, v0')
    if i: e(f'v_add_u32 v{q}, {64*i}, v{q}')
    e(f'v_mul_u32_u24 v{vTMP}, s4, v{q}')
    e(f'v_lshrrev_b32 v{vTMP}, 15, v{vTMP}')
    e(f'v_and_b32 v{vTMP}, 2, v{vTMP}')
    if i == 0: e(f'v_cmp_gt_u32 vcc, s{sT1}, v{q}')
    if i == 4: e(f'v_cmp_le_u32 vcc, s3, v{q}')
    e(f'v_xor_b32 v{q}, v{vTMP}, v{q}')
    e(f'v_lshlrev_b32 v{q}, 4, v{q}')
    if 0 < i < 4: e(f'v_subrev_u32 v{q}, {1024*i}, v{q}')
    if i in (0, 4):
        e(f'v_mov_b32 v{vTMP}, s5')
        e(f'v_cndmask_b32 v{q}, v{q}, v{vTMP}, vcc')

def dma_rows(ra, rb):
    items = []
    def head():
        selg(sT0, row_slot[ra], row_slot[rb])
    items.append((8, head))
    def head2():
        e(f's_add_u32 m0, s{sT0}, s{sW5120}')
        if rb - 6 == ra:
            e(f's_add_u32 s{sT1}, s{sROW}, {ra*ROWB}')
        else:
            selg(sT1, ra*ROWB, (rb-6)*ROWB)
            e(f's_add_u32 s{sT1}, s{sT1}, s{sROW}')
        if ra == 0:
            e(f's_or_b32 s{sT0}, s{sTY}, s{sGRP}')
            e(f's_cmp_eq_u32 s{sT0}, 0')
            e(f's_cselect_b32 s{sT1}, {BIG}, s{sT1}')
        if rb == 13:
            e(f's_add_u32 s{sT0}, s{sTY}, s{sGRP}')
            e(f's_cmp_eq_u32 s{sT0}, 32')
            e(f's_cselect_b32 s{sT1}, {BIG}, s{sT1}')
    items.append((8, head2))
    for i in range(4):
        items.append((8, lambda i=i: e.vm(f'buffer_load_dwordx4 v{vRW+i}, s[{sX}:{sX+3}], s{sT1} offen offset:{1024*i} lds')))
    items.append((4, lambda: e(f's_add_u32 m0, m0, 4096')))
    def last():
        e(f's_mov_b64 exec, s[{sMROW}:{sMROW+1}]')
        tok = e.vm(f'buffer_load_dwordx4 v{vRW+4}, s[{sX}:{sX+3}], s{sT1} offen lds')
        e('s_mov_b64 exec, -1')
        return tok
    items.append((16, last))
    return items

tok_row = {}
tok_row[0] = run(dma_rows(0, 6))
tok_tap[1] = run(dma_tap(1))
tok_tap[2] = run(dma_tap(2))
tok_row[1] = run(dma_rows(1, 7))
for t in (3, 4, 5): tok_tap[t] = run(dma_tap(t))
stamp()

e(f'v_and_b32 v{vCV}, 15, v0')
e(f'v_lshrrev_b32 v{vCV+1}, 4, v0')
for dx in range(3):
    e(f'v_add_u32 v{vTMP}, {dx}, v{vCV}')
    e(f'v_mul_u32_u24 v{vB0+dx}, 192, v{vTMP}')
    e(f'v_lshrrev_b32 v{vTMP}, 1, v{vTMP}')
    e(f'v_and_b32 v{vTMP}, 2, v{vTMP}')
    e(f'v_xor_b32 v{vTMP}, v{vTMP}, v{vCV+1}')
    e(f'v_lshl_add_u32 v{vB0+dx}, v{vTMP}, 4, v{vB0+dx}')
e(f'v_mul_u32_u24 v{vS4}, 192, v{vCV}')
e(f's_lshl_b32 s{sT0}, s{sH}, 5\ns_add_u32 s{sT0}, s{sT0}, 64')
e(f'v_lshl_add_u32 v{vS2}, v{vCV+1}, 3, v{vS4}')
e(f'v_add_u32 v{vS2}, s{sT0}, v{vS2}')
e(f's_lshl_b32 s{sT1}, s{sH}, 7')
e(f'v_lshl_add_u32 v{vS4}, v{vCV+1}, 4, v{vS4}')
e(f'v_add_u32 v{vS4}, s{sT1}, v{vS4}')
e(f'v_lshrrev_b32 v{vTMP}, 2, v{vCV}')
e(f'v_lshl_add_u32 v{vTMP}, v{vCV+1}, 3, v{vTMP}')
e(f'v_mul_u32_u24 v{vTMP}, 192, v{vTMP}')
e(f'v_and_b32 v{vCV}, 3, v{vCV}')
e(f'v_lshl_add_u32 v{vT0}, v{vCV}, 4, v{vTMP}')
e(f'v_add_u32 v{vT0}, s{sT1}, v{vT0}')
e(f'v_lshl_add_u32 v{vT0+1}, v{vCV}, 3, v{vTMP}')
e(f'v_add_u32 v{vT0+1}, s{sT0}, v{vT0+1}')

groups = []
for dx in range(3):
    for b in range(3): groups.append((0, b, [0], [dx]))
for b in range(3): groups.append((1, b, [0], [0, 1, 2]))
for b in range(3): groups.append((1, b, [1], [0, 1, 2]))
for b in range(3): groups.append((2, b, [1, 0], [0, 1, 2]))
for b in range(3): groups.append((2, b, [2], [0, 1, 2]))
for i in range(3, 8):
    dys = [dy for dy in (2, 1, 0) if 0 <= i - dy <= 5]
    for b in range(3): groups.append((i, b, dys, [0, 1, 2]))

mf = []
frags = []
started = set()
chain_end = {}
gstart = []
for gi, (i, b, dys, dxs) in enumerate(groups):
    gstart.append(len(mf))
    fl = []
    for dx in dxs:
        for k in range(3):
            fl.append(len(frags)); frags.append(dict(i=i, b=b, dx=dx, k=k, first=None, last=None))
    for dy in dys:
        o = i - dy
        for j in range(3):
            for F in fl:
                fr = frags[F]
                first = (o, b, j) not in started
                started.add((o, b, j))
                if fr['first'] is None: fr['first'] = len(mf)
                fr['last'] = len(mf)
                mf.append(dict(acc=acc(o, b, j), t=3*dy+fr['dx'], k=fr['k'], j=j, F=F, first=first))
            chain_end[(o, b, j)] = len(mf) - 1
assert len(mf) == 1458
def gidx(i, b, n=0):
    c = [g for g, x in enumerate(groups) if x[0] == i and x[1] == b]
    return c[n]

S1 = []
tokF = {}; tokW = {}
def add_frag(F):
    fr = frags[F]
    mn = frags[F - NS]['last'] + 1 if F >= NS else 0
    def fn():
        d = vF + 4 * (F % NS)
        tokF[F] = e.lds(f'ds_read_b128 {vr(d,4)}, v{vB+fr["dx"]} offset:{fr["b"]*3072+fr["k"]*64}')
    S1.append([mn, 8, fn, ('F', F)])
def add_rowbase(i):
    def f0():
        selg(3, row_slot[i], row_slot[i+6])
    S1.append([0, 8, f0, None])
    S1.append([0, 8, lambda: e(f'v_add_u32 v{vB}, s3, v{vB0}\nv_add_u32 v{vB+1}, s3, v{vB0+1}'), None])
    S1.append([0, 4, lambda: e(f'v_add_u32 v{vB+2}, s3, v{vB0+2}'), None])
def tap_items(t):
    it = []
    it.append([0, 8, lambda: e(f'v_add_u32 v{vT}, {tap_slot[t]}, v{vT0}\nv_add_u32 v{vT+1}, {tap_slot[t]}, v{vT0+1}'), None])
    for j in range(3):
        for k in range(3):
            p, r = wreg(t, k, j)
            for q in range(2):
                def fn(p=p, r=r, q=q, j=j, k=k):
                    a = vT if j < 2 else vT + 1
                    off = (32*k + 4*q) * 192 + (8*j if j < 2 else 0)
                    tk = e.lds(f'ds_read_b64_tr_b16 {vr(r+2*q,2,p)}, v{a} offset:{off}')
                    if q == 1: tokW[(t, k, j)] = tk
                it.append([0, 8, fn, ('W', t, k, j) if q == 1 else None])
    return it
def add_barrier(mn, vmtok):
    def fn():
        global p2
        while vmtok:
            try:
                vmtok(); break
            except KeyError:
                sys.stderr.write('dma flush\n'); S2[p2][2](); p2 += 1
        e.need(vm=vmtok() if vmtok else None, lds=e.lds_issued)
        e('s_barrier'); stamp(); bdone.add(mn + 1)
    S1.append([mn, 8, fn, None])
bdone = set()
def barrier_done(x): return x in bdone
S2 = []
def add_dma(items, store):
    for n, (c, f) in enumerate(items):
        if n == len(items) - 1:
            def g(f=f): store(f())
            S2.append([None, c, g])
        else: S2.append([None, c, f])
def release(mn):
    for it in S2:
        if it[0] is None: it[0] = mn
def merge(a, b):
    out = []; na, nb = len(a), len(b); ib = 0
    for ia, x in enumerate(a):
        out.append(x)
        while ib < nb and (ib + 1) * na <= (ia + 1) * nb: out.append(b[ib]); ib += 1
    return out + b[ib:]
def frag_items(Fs):
    n0 = len(S1)
    for F in Fs: add_frag(F)
    it = S1[n0:]; del S1[n0:]; return it
def gfr(g): return [F for F, fr in enumerate(frags) if gstart[g] <= fr['first'] < (gstart[g+1] if g+1 < len(groups) else 1e9)]

add_barrier(0, lambda: tok_row[0])
add_rowbase(0)
S1 += merge(tap_items(0), frag_items(gfr(0)))
S1 += frag_items(gfr(1))
add_barrier(0, lambda: tok_tap[1])
S1 += merge(tap_items(1), frag_items(gfr(2) + gfr(3) + gfr(4)))
add_barrier(gstart[3], lambda: tok_tap[2])
S1 += merge(tap_items(2), frag_items(gfr(5) + gfr(6) + gfr(7)))
S1 += frag_items(gfr(8))
b1 = gstart[8] + 3
add_barrier(b1, lambda: tok_tap[5])
for t in (6, 7, 8): add_dma(dma_tap(t), lambda tk, t=t: tok_tap.__setitem__(t, tk))
add_dma(dma_rows(2, 8), lambda tk: tok_row.__setitem__(2, tk))
release(b1 + 1)
add_rowbase(1)
g1 = gidx(1, 0)
S1 += frag_items(gfr(g1))
S1 += merge(tap_items(3) + tap_items(4) + tap_items(5), frag_items(gfr(g1+1) + gfr(g1+2)))
S1 += frag_items(gfr(g1+3) + gfr(g1+4) + gfr(g1+5))
b2 = gstart[g1+5] + 9
add_barrier(b2, lambda: tok_row[2])
add_dma(dma_rows(3, 9), lambda tk: tok_row.__setitem__(3, tk))
add_dma(dma_rows(4, 10), lambda tk: tok_row.__setitem__(4, tk))
add_dma(dma_rows(5, 11), lambda tk: tok_row.__setitem__(5, tk))
release(b2 + 1)
add_rowbase(2)
g2 = gidx(2, 0)
S1 += frag_items(gfr(g2))
S1 += merge(tap_items(6) + tap_items(7) + tap_items(8), frag_items(gfr(g2+1) + gfr(g2+2)))
S1 += frag_items(gfr(g2+3) + gfr(g2+4) + gfr(g2+5))
b3 = gstart[g2+5] + 9
add_barrier(b3, lambda: tok_row[3])
add_dma(dma_rows(12, 13), lambda tk: tok_row.__setitem__(6, tk))
release(b3 + 1)
for i in range(3, 8):
    if i == 4: add_barrier(gstart[gidx(3, 2)] + 9, lambda: tok_row[5])
    if i == 5: add_barrier(gstart[gidx(4, 2)] + 9, lambda: tok_row[6])
    add_rowbase(i)
    for b in range(3): S1 += frag_items(gfr(gidx(i, b)))
S3 = []
for o in range(6):
    for b in range(3):
        for j in range(3):
            mn = chain_end[(o, b, j)] + 9
            a = acc(o, b, j); d = vCV + 2 * j
            S3.append([mn, 8, lambda a=a, d=d: e(f'v_cvt_pk_bf16_f32 v{d}, v{a}, v{a+1}\nv_cvt_pk_bf16_f32 v{d+1}, v{a+2}, v{a+3}'), chain_end[(o, b, j)]])
            if j == 1:
                S3.append([mn, 4, lambda o=o, b=b: e(f's_add_u32 s43, s{sOUT}, {o*ROWB + b*3072}'), None])
                S3.append([mn, 24, lambda: e.vm(f'buffer_store_dwordx4 {vr(vCV,4)}, v{vS4}, s[{sO}:{sO+3}], s43 offen'), None])
            if j == 2:
                S3.append([mn, 16, lambda: e.vm(f'buffer_store_dwordx2 {vr(vCV+4,2)}, v{vS2}, s[{sO}:{sO+3}], s43 offen'), None])

p1 = p2 = p3 = 0
def flush1(key_present):
    global p1
    while not key_present():
        S1[p1][2](); p1 += 1
stalls = 0
last_dma = -100
DMA_GAP = 2
for m, M in enumerate(mf):
    F = M['F']; wk = (M['t'], M['k'], M['j'])
    if F not in tokF or wk not in tokW:
        if m: stalls += 1
        flush1(lambda: F in tokF and wk in tokW)
    e.need(lds=max(tokF[F], tokW[wk]))
    p, r = wreg(*wk); a = M['acc']; f = vF + 4 * (F % NS)
    e(f'v_mfma_f32_16x16x32_bf16 {vr(a,4)}, {vr(r,4,p)}, {vr(f,4)}, {"0" if M["first"] else vr(a,4)}')
    budget = 8
    if m + 1 < len(mf):
        N = mf[m+1]; nk = (N['t'], N['k'], N['j'])
        if N['F'] in tokF and nk in tokW and max(tokF[N['F']], tokW[nk]) > e.lds_done: budget -= 4
    while budget > 0:
        if p2 < len(S2) and S2[p2][0] <= m + 1 and barrier_done(S2[p2][0]) and m - last_dma >= DMA_GAP and (S2[p2][1] <= budget or budget == 8):
            budget -= S2[p2][1]; S2[p2][2](); p2 += 1; last_dma = m
        elif p1 < len(S1) and S1[p1][0] <= m + 1 and (S1[p1][1] <= budget):
            budget -= S1[p1][1]; S1[p1][2](); p1 += 1
        elif p3 < len(S3) and S3[p3][0] <= m + 1 and (S3[p3][1] <= budget or budget == 8):
            budget -= S3[p3][1]; S3[p3][2](); p3 += 1
        else: break
assert p1 == len(S1) and p2 == len(S2), (p1, len(S1), p2, len(S2))
stamp()
while p3 < len(S3):
    it = S3[p3]
    if it[3] is not None and it[3] > len(mf) - 9 and not getattr(e, 'padded', False):
        e('s_nop 7'); e.padded = True
    it[2](); p3 += 1
sys.stderr.write(f'forced flushes: {stalls}\n')
if STAMP:
    e('s_waitcnt vmcnt(0)')
    stamp()
    e('s_waitcnt lgkmcnt(0)')
    e(f's_lshl_b32 s3, s2, 2\ns_add_u32 s3, s3, s{sWAVE}\ns_lshl_b32 s3, s3, 8')
    e(f'v_mov_b32 v1, s3')
    for i in range(2 * nstamp[0]):
        e(f'v_mov_b32 v2, s{sST+i}\nbuffer_store_dword v2, v1, s[{sWS}:{sWS+3}], 0 offen offset:{4*i}')
    sys.stderr.write(f'nstamp {nstamp[0]}\n')
e('Lend:\ns_endpgm')
e(f'''.section .rodata,"a"
.p2align 6
.amdhsa_kernel {KN}
  .amdhsa_next_free_vgpr 512
  .amdhsa_next_free_sgpr 102
  .amdhsa_accum_offset 256
  .amdhsa_group_segment_fixed_size 0
  .amdhsa_kernarg_size 40
  .amdhsa_user_sgpr_count 2
  .amdhsa_user_sgpr_kernarg_segment_ptr 1
  .amdhsa_system_sgpr_workgroup_id_x 1
.end_amdhsa_kernel''')
sys.stdout.write(e.text())
```

```python
import sys
from asmlib import *

STAMP = 'stamp' in sys.argv
def opt(name, default):
    for a in sys.argv[1:]:
        if a.startswith(name + '='): return a.split('=', 1)[1]
    return default
XF = opt('xf', '').replace('_', ' '); WF = opt('wf', '').replace('_', ' '); SF = opt('sf', '').replace('_', ' ')
KN = 'standalone__winograd__vision_kernel'
ROWB = 73728
TAPB = 18432
XB = 28311552
BIG = 0x40000000
PITCH = 9600
W = [TAPB * i for i in range(6)]
A = [110592 + PITCH * i for i in range(5)]
row_slot = {0: A[0], 6: A[1], 1: A[2], 7: A[3], 2: A[4], 8: A[0],
            3: 55296, 9: 55296 + PITCH, 4: 55296 + 2 * PITCH, 10: 55296 + 3 * PITCH, 5: 55296 + 4 * PITCH,
            11: A[2], 12: 0, 13: PITCH}
tap_slot = {t: W[t % 6] for t in range(9)}
LDS = 158592

vLANE = 0
vB0 = 1
vB = 4
vRW = 7
vWW = 12
vT0 = 13
vT = 15
vS4 = 17; vS2 = 18
vTMP = 19
vCV = 20
vF = 28
NS = 13
vACC = vF + 4 * NS
vWT = vACC + 108
assert vWT + 68 == 256
def wreg(t, k, j):
    f = (t * 3 + k) * 3 + j
    if f < 64: return ('a', 4 * f)
    return ('v', vWT + 4 * (f - 64))
def acc(o, b, j):
    return vACC + ((o % 3) * 9 + b * 3 + j) * 4
sX, sWp, sO, sWS = 12, 16, 20, 24
sWAVE, sGRP, sH, sROW, sT0, sT1 = 28, 29, 30, 31, 32, 33
sMROW, sMHALF, sOUT = 34, 36, 38
sWV4608, sW5120 = 39, 40
sTX, sTY = 41, 42
sST = 44

e = Emitter()
nstamp = [0]
def stamp():
    if STAMP:
        e(f's_memrealtime s[{sST+2*nstamp[0]}:{sST+2*nstamp[0]+1}]'); nstamp[0] += 1

hdr = open('standalone__winograd__vision.s.ref').read().split('; Override')[0]
e(hdr.rstrip())
e(f'; @launch grid=(256,1,1) block=(256,1,1) lds={LDS}')
e('.amdgcn_target "amdgcn-amd-amdhsa--gfx950"')
e(f'.text\n.globl {KN}\n.p2align 8\n.type {KN},@function\n{KN}:')
e('s_cmp_ge_u32 s2, 256\ns_cbranch_scc1 Lend')
stamp()
e('s_load_dwordx4 s[4:7], s[0:1], 0')
e('s_load_dwordx2 s[8:9], s[0:1], 16')
if STAMP: e('s_load_dwordx2 s[10:11], s[0:1], 32')
e(f'v_lshrrev_b32 v{vTMP}, 6, v0')
e(f'v_and_b32 v0, 63, v0')
e(f'v_readfirstlane_b32 s{sWAVE}, v{vTMP}')
e(f's_and_b32 s{sT0}, s2, 7')
e(f's_lshr_b32 s{sT1}, s2, 3')
e(f's_and_b32 s{sTX}, s{sT1}, 7')
e(f's_lshr_b32 s{sT1}, s{sT1}, 3')
e(f's_lshl_b32 s{sT0}, s{sT0}, 2')
e(f's_add_u32 s{sTY}, s{sT0}, s{sT1}')
e(f's_lshr_b32 s{sGRP}, s{sWAVE}, 1')
e(f's_and_b32 s{sH}, s{sWAVE}, 1')
e(f's_mul_i32 s{sWV4608}, s{sWAVE}, 4608')
e(f's_mul_i32 s{sW5120}, s{sH}, 5120')
e(f'v_lshlrev_b32 v{vWW}, 4, v0')
e(f'v_add_u32 v{vWW}, s{sWV4608}, v{vWW}')
e(f's_mov_b32 s{sMHALF}, -1\ns_mov_b32 s{sMHALF+1}, 0')
e(f's_mov_b32 s{sWp+2}, {9*TAPB}\ns_mov_b32 s{sWp+3}, 0x20000')
e('s_waitcnt lgkmcnt(0)')
e(f's_mov_b32 s{sWp}, s6\ns_mov_b32 s{sWp+1}, s7')

def selg(d, a, b):
    e(f's_mul_i32 s{d}, s{sGRP}, {b-a}')
    e(f's_add_u32 s{d}, s{d}, {a}')
def dma_tap(t):
    items = []
    def head():
        e(f's_add_u32 m0, s{sWV4608}, {tap_slot[t]}')
        e(f's_mov_b32 s{sT0}, {t*TAPB}')
    items.append((8, head))
    for i in range(4):
        items.append((8, lambda i=i: e.vm(f'buffer_load_dwordx4 v{vWW}, s[{sWp}:{sWp+3}], s{sT0} offen offset:{1024*i} {WF} lds')))
    def mid():
        e(f's_add_u32 m0, m0, 4096')
        e(f's_add_u32 s{sT0}, s{sT0}, 4096')
    items.append((8, mid))
    def last():
        e(f's_mov_b64 exec, s[{sMHALF}:{sMHALF+1}]')
        tok = e.vm(f'buffer_load_dwordx4 v{vWW}, s[{sWp}:{sWp+3}], s{sT0} offen {WF} lds')
        e('s_mov_b64 exec, -1')
        return tok
    items.append((16, last))
    return items

def run(items):
    tok = None
    for c, f in items:
        r = f()
        if r is not None: tok = r
    return tok

tok_tap = {}
tok_tap[0] = run(dma_tap(0))

e(f's_sub_u32 s{sX}, s4, 192\ns_subb_u32 s{sX+1}, s5, 0\ns_mov_b32 s{sX+2}, {XB+192}\ns_mov_b32 s{sX+3}, 0x20000')
e(f's_mov_b32 s{sO}, s8\ns_mov_b32 s{sO+1}, s9\ns_mov_b32 s{sO+2}, {XB}\ns_mov_b32 s{sO+3}, 0x20000')
if STAMP: e(f's_mov_b32 s{sWS}, s10\ns_mov_b32 s{sWS+1}, s11\ns_mov_b32 s{sWS+2}, 0x1000000\ns_mov_b32 s{sWS+3}, 0x20000')
e(f's_mul_i32 s{sOUT}, s{sTY}, {12*ROWB}')
e(f's_mul_i32 s{sT0}, s{sGRP}, {6*ROWB}')
e(f's_add_u32 s{sOUT}, s{sOUT}, s{sT0}')
e(f's_mul_i32 s{sT0}, s{sTX}, {48*192}')
e(f's_add_u32 s{sOUT}, s{sOUT}, s{sT0}')
e(f's_sub_u32 s{sROW}, s{sOUT}, {ROWB}')
e(f's_cmp_eq_u32 s{sH}, 0')
e(f's_cselect_b32 s{sMROW}, -1, 0xffffff')
e(f's_cselect_b32 s{sMROW+1}, -1, 0')
e(f's_mul_i32 s{sT0}, s{sH}, 320')
e(f's_cmp_eq_u32 s{sTX}, 0\ns_cselect_b32 s{sT1}, 12, 0')
e(f's_cmp_eq_u32 s{sTX}, 7\ns_cselect_b32 s3, 588, -1')
e(f's_mov_b32 s4, 1366\ns_mov_b32 s5, {BIG}')
for i in range(5):
    q = vRW + i
    e(f'v_add_u32 v{q}, s{sT0}, v0')
    if i: e(f'v_add_u32 v{q}, {64*i}, v{q}')
    e(f'v_mul_u32_u24 v{vTMP}, s4, v{q}')
    e(f'v_lshrrev_b32 v{vTMP}, 15, v{vTMP}')
    e(f'v_and_b32 v{vTMP}, 2, v{vTMP}')
    if i == 0: e(f'v_cmp_gt_u32 vcc, s{sT1}, v{q}')
    if i == 4: e(f'v_cmp_le_u32 vcc, s3, v{q}')
    e(f'v_xor_b32 v{q}, v{vTMP}, v{q}')
    e(f'v_lshlrev_b32 v{q}, 4, v{q}')
    if 0 < i < 4: e(f'v_subrev_u32 v{q}, {1024*i}, v{q}')
    if i in (0, 4):
        e(f'v_mov_b32 v{vTMP}, s5')
        e(f'v_cndmask_b32 v{q}, v{q}, v{vTMP}, vcc')

def dma_rows(ra, rb):
    items = []
    def head():
        selg(sT0, row_slot[ra], row_slot[rb])
    items.append((8, head))
    def head2():
        e(f's_add_u32 m0, s{sT0}, s{sW5120}')
        if rb - 6 == ra:
            e(f's_add_u32 s{sT1}, s{sROW}, {ra*ROWB}')
        else:
            selg(sT1, ra*ROWB, (rb-6)*ROWB)
            e(f's_add_u32 s{sT1}, s{sT1}, s{sROW}')
        if ra == 0:
            e(f's_or_b32 s{sT0}, s{sTY}, s{sGRP}')
            e(f's_cmp_eq_u32 s{sT0}, 0')
            e(f's_cselect_b32 s{sT1}, {BIG}, s{sT1}')
        if rb == 13:
            e(f's_add_u32 s{sT0}, s{sTY}, s{sGRP}')
            e(f's_cmp_eq_u32 s{sT0}, 32')
            e(f's_cselect_b32 s{sT1}, {BIG}, s{sT1}')
    items.append((8, head2))
    for i in range(4):
        items.append((8, lambda i=i: e.vm(f'buffer_load_dwordx4 v{vRW+i}, s[{sX}:{sX+3}], s{sT1} offen offset:{1024*i} {XF} lds')))
    items.append((4, lambda: e(f's_add_u32 m0, m0, 4096')))
    def last():
        e(f's_mov_b64 exec, s[{sMROW}:{sMROW+1}]')
        tok = e.vm(f'buffer_load_dwordx4 v{vRW+4}, s[{sX}:{sX+3}], s{sT1} offen {XF} lds')
        e('s_mov_b64 exec, -1')
        return tok
    items.append((16, last))
    return items

tok_row = {}
tok_row[0] = run(dma_rows(0, 6))
tok_tap[1] = run(dma_tap(1))
tok_tap[2] = run(dma_tap(2))
tok_row[1] = run(dma_rows(1, 7))
for t in (3, 4, 5): tok_tap[t] = run(dma_tap(t))
stamp()

e(f'v_and_b32 v{vCV}, 15, v0')
e(f'v_lshrrev_b32 v{vCV+1}, 4, v0')
for dx in range(3):
    e(f'v_add_u32 v{vTMP}, {dx}, v{vCV}')
    e(f'v_mul_u32_u24 v{vB0+dx}, 192, v{vTMP}')
    e(f'v_lshrrev_b32 v{vTMP}, 1, v{vTMP}')
    e(f'v_and_b32 v{vTMP}, 2, v{vTMP}')
    e(f'v_xor_b32 v{vTMP}, v{vTMP}, v{vCV+1}')
    e(f'v_lshl_add_u32 v{vB0+dx}, v{vTMP}, 4, v{vB0+dx}')
e(f'v_mul_u32_u24 v{vS4}, 192, v{vCV}')
e(f's_lshl_b32 s{sT0}, s{sH}, 5\ns_add_u32 s{sT0}, s{sT0}, 64')
e(f'v_lshl_add_u32 v{vS2}, v{vCV+1}, 3, v{vS4}')
e(f'v_add_u32 v{vS2}, s{sT0}, v{vS2}')
e(f's_lshl_b32 s{sT1}, s{sH}, 7')
e(f'v_lshl_add_u32 v{vS4}, v{vCV+1}, 4, v{vS4}')
e(f'v_add_u32 v{vS4}, s{sT1}, v{vS4}')
e(f'v_lshrrev_b32 v{vTMP}, 2, v{vCV}')
e(f'v_lshl_add_u32 v{vTMP}, v{vCV+1}, 3, v{vTMP}')
e(f'v_mul_u32_u24 v{vTMP}, 192, v{vTMP}')
e(f'v_and_b32 v{vCV}, 3, v{vCV}')
e(f'v_lshl_add_u32 v{vT0}, v{vCV}, 4, v{vTMP}')
e(f'v_add_u32 v{vT0}, s{sT1}, v{vT0}')
e(f'v_lshl_add_u32 v{vT0+1}, v{vCV}, 3, v{vTMP}')
e(f'v_add_u32 v{vT0+1}, s{sT0}, v{vT0+1}')

groups = []
for dx in range(3):
    for b in range(3): groups.append((0, b, [0], [dx]))
for b in range(3): groups.append((1, b, [0], [0, 1, 2]))
for b in range(3): groups.append((1, b, [1], [0, 1, 2]))
for b in range(3): groups.append((2, b, [1, 0], [0, 1, 2]))
for b in range(3): groups.append((2, b, [2], [0, 1, 2]))
for i in range(3, 8):
    dys = [dy for dy in (2, 1, 0) if 0 <= i - dy <= 5]
    for b in range(3): groups.append((i, b, dys, [0, 1, 2]))

mf = []
frags = []
started = set()
chain_end = {}
gstart = []
for gi, (i, b, dys, dxs) in enumerate(groups):
    gstart.append(len(mf))
    fl = []
    for dx in dxs:
        for k in range(3):
            fl.append(len(frags)); frags.append(dict(i=i, b=b, dx=dx, k=k, first=None, last=None))
    for dy in dys:
        o = i - dy
        for j in range(3):
            for F in fl:
                fr = frags[F]
                first = (o, b, j) not in started
                started.add((o, b, j))
                if fr['first'] is None: fr['first'] = len(mf)
                fr['last'] = len(mf)
                mf.append(dict(acc=acc(o, b, j), t=3*dy+fr['dx'], k=fr['k'], j=j, F=F, first=first))
            chain_end[(o, b, j)] = len(mf) - 1
assert len(mf) == 1458
def gidx(i, b, n=0):
    c = [g for g, x in enumerate(groups) if x[0] == i and x[1] == b]
    return c[n]

S1 = []
tokF = {}; tokW = {}
def add_frag(F):
    fr = frags[F]
    mn = frags[F - NS]['last'] + 1 if F >= NS else 0
    def fn():
        d = vF + 4 * (F % NS)
        tokF[F] = e.lds(f'ds_read_b128 {vr(d,4)}, v{vB+fr["dx"]} offset:{fr["b"]*3072+fr["k"]*64}')
    S1.append([mn, 8, fn, ('F', F)])
def add_rowbase(i):
    def f0():
        selg(3, row_slot[i], row_slot[i+6])
    S1.append([0, 8, f0, None])
    S1.append([0, 8, lambda: e(f'v_add_u32 v{vB}, s3, v{vB0}\nv_add_u32 v{vB+1}, s3, v{vB0+1}'), None])
    S1.append([0, 4, lambda: e(f'v_add_u32 v{vB+2}, s3, v{vB0+2}'), None])
def tap_items(t):
    it = []
    it.append([0, 8, lambda: e(f'v_add_u32 v{vT}, {tap_slot[t]}, v{vT0}\nv_add_u32 v{vT+1}, {tap_slot[t]}, v{vT0+1}'), None])
    for j in range(3):
        for k in range(3):
            p, r = wreg(t, k, j)
            for q in range(2):
                def fn(p=p, r=r, q=q, j=j, k=k):
                    a = vT if j < 2 else vT + 1
                    off = (32*k + 4*q) * 192 + (8*j if j < 2 else 0)
                    tk = e.lds(f'ds_read_b64_tr_b16 {vr(r+2*q,2,p)}, v{a} offset:{off}')
                    if q == 1: tokW[(t, k, j)] = tk
                it.append([0, 8, fn, ('W', t, k, j) if q == 1 else None])
    return it
def add_barrier(mn, vmtok):
    def fn():
        global p2
        while vmtok:
            try:
                vmtok(); break
            except KeyError:
                sys.stderr.write('dma flush\n'); S2[p2][2](); p2 += 1
        e.need(vm=vmtok() if vmtok else None, lds=e.lds_issued)
        e('s_barrier'); stamp(); bdone.add(mn + 1)
    S1.append([mn, 8, fn, None])
bdone = set()
def barrier_done(x): return x in bdone
S2 = []
def add_dma(items, store):
    for n, (c, f) in enumerate(items):
        if n == len(items) - 1:
            def g(f=f): store(f())
            S2.append([None, c, g])
        else: S2.append([None, c, f])
def release(mn):
    for it in S2:
        if it[0] is None: it[0] = mn
def merge(a, b):
    out = []; na, nb = len(a), len(b); ib = 0
    for ia, x in enumerate(a):
        out.append(x)
        while ib < nb and (ib + 1) * na <= (ia + 1) * nb: out.append(b[ib]); ib += 1
    return out + b[ib:]
def frag_items(Fs):
    n0 = len(S1)
    for F in Fs: add_frag(F)
    it = S1[n0:]; del S1[n0:]; return it
def gfr(g): return [F for F, fr in enumerate(frags) if gstart[g] <= fr['first'] < (gstart[g+1] if g+1 < len(groups) else 1e9)]

add_barrier(0, lambda: tok_row[0])
add_rowbase(0)
S1 += merge(tap_items(0), frag_items(gfr(0)))
S1 += frag_items(gfr(1))
add_barrier(0, lambda: tok_tap[1])
S1 += merge(tap_items(1), frag_items(gfr(2) + gfr(3) + gfr(4)))
add_barrier(gstart[3], lambda: tok_tap[2])
S1 += merge(tap_items(2), frag_items(gfr(5) + gfr(6) + gfr(7)))
S1 += frag_items(gfr(8))
b1 = gstart[8] + 3
add_barrier(b1, lambda: tok_tap[5])
for t in (6, 7, 8): add_dma(dma_tap(t), lambda tk, t=t: tok_tap.__setitem__(t, tk))
add_dma(dma_rows(2, 8), lambda tk: tok_row.__setitem__(2, tk))
release(b1 + 1)
add_rowbase(1)
g1 = gidx(1, 0)
S1 += frag_items(gfr(g1))
S1 += merge(tap_items(3) + tap_items(4) + tap_items(5), frag_items(gfr(g1+1) + gfr(g1+2)))
S1 += frag_items(gfr(g1+3) + gfr(g1+4) + gfr(g1+5))
b2 = gstart[g1+5] + 9
add_barrier(b2, lambda: tok_row[2])
add_dma(dma_rows(3, 9), lambda tk: tok_row.__setitem__(3, tk))
add_dma(dma_rows(4, 10), lambda tk: tok_row.__setitem__(4, tk))
add_dma(dma_rows(5, 11), lambda tk: tok_row.__setitem__(5, tk))
release(b2 + 1)
add_rowbase(2)
g2 = gidx(2, 0)
S1 += frag_items(gfr(g2))
S1 += merge(tap_items(6) + tap_items(7) + tap_items(8), frag_items(gfr(g2+1) + gfr(g2+2)))
S1 += frag_items(gfr(g2+3) + gfr(g2+4) + gfr(g2+5))
b3 = gstart[g2+5] + 9
add_barrier(b3, lambda: tok_row[3])
add_dma(dma_rows(12, 13), lambda tk: tok_row.__setitem__(6, tk))
release(b3 + 1)
for i in range(3, 8):
    if i == 4: add_barrier(gstart[gidx(3, 2)] + 9, lambda: tok_row[5])
    if i == 5: add_barrier(gstart[gidx(4, 2)] + 9, lambda: tok_row[6])
    add_rowbase(i)
    for b in range(3): S1 += frag_items(gfr(gidx(i, b)))
S3 = []
for o in range(6):
    for b in range(3):
        for j in range(3):
            mn = chain_end[(o, b, j)] + 9
            a = acc(o, b, j); d = vCV + 2 * j
            S3.append([mn, 8, lambda a=a, d=d: e(f'v_cvt_pk_bf16_f32 v{d}, v{a}, v{a+1}\nv_cvt_pk_bf16_f32 v{d+1}, v{a+2}, v{a+3}'), chain_end[(o, b, j)]])
            if j == 1:
                S3.append([mn, 4, lambda o=o, b=b: e(f's_add_u32 s43, s{sOUT}, {o*ROWB + b*3072}'), None])
                S3.append([mn, 24, lambda: e.vm(f'buffer_store_dwordx4 {vr(vCV,4)}, v{vS4}, s[{sO}:{sO+3}], s43 offen {SF}'), None])
            if j == 2:
                S3.append([mn, 16, lambda: e.vm(f'buffer_store_dwordx2 {vr(vCV+4,2)}, v{vS2}, s[{sO}:{sO+3}], s43 offen {SF}'), None])

p1 = p2 = p3 = 0
def flush1(key_present):
    global p1
    while not key_present():
        S1[p1][2](); p1 += 1
stalls = 0
last_dma = -100
DMA_GAP = 2
for m, M in enumerate(mf):
    F = M['F']; wk = (M['t'], M['k'], M['j'])
    if F not in tokF or wk not in tokW:
        if m: stalls += 1
        flush1(lambda: F in tokF and wk in tokW)
    e.need(lds=max(tokF[F], tokW[wk]))
    p, r = wreg(*wk); a = M['acc']; f = vF + 4 * (F % NS)
    e(f'v_mfma_f32_16x16x32_bf16 {vr(a,4)}, {vr(r,4,p)}, {vr(f,4)}, {"0" if M["first"] else vr(a,4)}')
    budget = 8
    if m + 1 < len(mf):
        N = mf[m+1]; nk = (N['t'], N['k'], N['j'])
        if N['F'] in tokF and nk in tokW and max(tokF[N['F']], tokW[nk]) > e.lds_done: budget -= 4
    while budget > 0:
        if p2 < len(S2) and S2[p2][0] <= m + 1 and barrier_done(S2[p2][0]) and m - last_dma >= DMA_GAP and (S2[p2][1] <= budget or budget == 8):
            budget -= S2[p2][1]; S2[p2][2](); p2 += 1; last_dma = m
        elif p1 < len(S1) and S1[p1][0] <= m + 1 and (S1[p1][1] <= budget):
            budget -= S1[p1][1]; S1[p1][2](); p1 += 1
        elif p3 < len(S3) and S3[p3][0] <= m + 1 and (S3[p3][1] <= budget or budget == 8):
            budget -= S3[p3][1]; S3[p3][2](); p3 += 1
        else: break
assert p1 == len(S1) and p2 == len(S2), (p1, len(S1), p2, len(S2))
stamp()
while p3 < len(S3):
    it = S3[p3]
    if it[3] is not None and it[3] > len(mf) - 9 and not getattr(e, 'padded', False):
        e('s_nop 7'); e.padded = True
    it[2](); p3 += 1
sys.stderr.write(f'forced flushes: {stalls}\n')
if STAMP:
    e('s_waitcnt vmcnt(0)')
    stamp()
    e('s_waitcnt lgkmcnt(0)')
    e(f's_lshl_b32 s3, s2, 2\ns_add_u32 s3, s3, s{sWAVE}\ns_lshl_b32 s3, s3, 8')
    e(f'v_mov_b32 v1, s3')
    for i in range(2 * nstamp[0]):
        e(f'v_mov_b32 v2, s{sST+i}\nbuffer_store_dword v2, v1, s[{sWS}:{sWS+3}], 0 offen offset:{4*i}')
    sys.stderr.write(f'nstamp {nstamp[0]}\n')
e('Lend:\ns_endpgm')
e(f'''.section .rodata,"a"
.p2align 6
.amdhsa_kernel {KN}
  .amdhsa_next_free_vgpr 512
  .amdhsa_next_free_sgpr 102
  .amdhsa_accum_offset 256
  .amdhsa_group_segment_fixed_size 0
  .amdhsa_kernarg_size 40
  .amdhsa_user_sgpr_count 2
  .amdhsa_user_sgpr_kernarg_segment_ptr 1
  .amdhsa_system_sgpr_workgroup_id_x 1
.end_amdhsa_kernel''')
sys.stdout.write(e.text())
```

```python
import sys
from asmlib import *

STAMP = 'stamp' in sys.argv
def opt(name, default):
    for a in sys.argv[1:]:
        if a.startswith(name + '='): return a.split('=', 1)[1]
    return default
XF = opt('xf', '').replace('_', ' '); WF = opt('wf', '').replace('_', ' '); SF = opt('sf', '').replace('_', ' ')
KN = 'standalone__winograd__vision_kernel'
ROWB = 73728
TAPB = 18432
XB = 28311552
BIG = 0x40000000
PITCH = 9600
W = [TAPB * i for i in range(6)]
A = [110592 + PITCH * i for i in range(5)]
row_slot = {0: A[0], 6: A[1], 1: A[2], 7: A[3], 2: A[4], 8: A[0],
            3: 55296, 9: 55296 + PITCH, 4: 55296 + 2 * PITCH, 10: 55296 + 3 * PITCH, 5: 55296 + 4 * PITCH,
            11: A[2], 12: 0, 13: PITCH}
tap_slot = {t: W[t % 6] for t in range(9)}
LDS = 158592

vLANE = 0
vB0 = 1
vB = 4
vRW = 7
vWW = 12
vT0 = 13
vT = 15
vS4 = 17; vS2 = 18
vTMP = 19
vCV = 20
vF = 28
NS = 13
vACC = vF + 4 * NS
vWT = vACC + 108
assert vWT + 68 == 256
def wreg(t, k, j):
    f = (t * 3 + k) * 3 + j
    if f < 64: return ('a', 4 * f)
    return ('v', vWT + 4 * (f - 64))
def acc(o, b, j):
    return vACC + ((o % 3) * 9 + b * 3 + j) * 4
sX, sWp, sO, sWS = 12, 16, 20, 24
sWAVE, sGRP, sH, sROW, sT0, sT1 = 28, 29, 30, 31, 32, 33
sMROW, sMHALF, sOUT = 34, 36, 38
sWV4608, sW5120 = 39, 40
sTX, sTY = 41, 42
sST = 44

e = Emitter()
nstamp = [0]
def stamp():
    if STAMP:
        e(f's_memrealtime s[{sST+2*nstamp[0]}:{sST+2*nstamp[0]+1}]'); nstamp[0] += 1

hdr = open('standalone__winograd__vision.s.ref').read().split('; Override')[0]
e(hdr.rstrip())
e(f'; @launch grid=(256,1,1) block=(256,1,1) lds={LDS}')
e('.amdgcn_target "amdgcn-amd-amdhsa--gfx950"')
e(f'.text\n.globl {KN}\n.p2align 8\n.type {KN},@function\n{KN}:')
e('s_cmp_ge_u32 s2, 256\ns_cbranch_scc1 Lend')
stamp()
SPIN = int(opt('spin', '0'))
if SPIN: e('s_memrealtime s[90:91]')
e('s_load_dwordx4 s[4:7], s[0:1], 0')
e('s_load_dwordx2 s[8:9], s[0:1], 16')
if STAMP: e('s_load_dwordx2 s[10:11], s[0:1], 32')
e(f'v_lshrrev_b32 v{vTMP}, 6, v0')
e(f'v_and_b32 v0, 63, v0')
e(f'v_readfirstlane_b32 s{sWAVE}, v{vTMP}')
e(f's_and_b32 s{sT0}, s2, 7')
e(f's_lshr_b32 s{sT1}, s2, 3')
e(f's_and_b32 s{sTX}, s{sT1}, 7')
e(f's_lshr_b32 s{sT1}, s{sT1}, 3')
e(f's_lshl_b32 s{sT0}, s{sT0}, 2')
e(f's_add_u32 s{sTY}, s{sT0}, s{sT1}')
e(f's_lshr_b32 s{sGRP}, s{sWAVE}, 1')
e(f's_and_b32 s{sH}, s{sWAVE}, 1')
e(f's_mul_i32 s{sWV4608}, s{sWAVE}, 4608')
e(f's_mul_i32 s{sW5120}, s{sH}, 5120')
e(f'v_lshlrev_b32 v{vWW}, 4, v0')
e(f'v_add_u32 v{vWW}, s{sWV4608}, v{vWW}')
e(f's_mov_b32 s{sMHALF}, -1\ns_mov_b32 s{sMHALF+1}, 0')
e(f's_mov_b32 s{sWp+2}, {9*TAPB}\ns_mov_b32 s{sWp+3}, 0x20000')
e('s_waitcnt lgkmcnt(0)')
e(f's_mov_b32 s{sWp}, s6\ns_mov_b32 s{sWp+1}, s7')

def selg(d, a, b):
    e(f's_mul_i32 s{d}, s{sGRP}, {b-a}')
    e(f's_add_u32 s{d}, s{d}, {a}')
def dma_tap(t):
    items = []
    def head():
        e(f's_add_u32 m0, s{sWV4608}, {tap_slot[t]}')
        e(f's_mov_b32 s{sT0}, {t*TAPB}')
    items.append((8, head))
    for i in range(4):
        items.append((8, lambda i=i: e.vm(f'buffer_load_dwordx4 v{vWW}, s[{sWp}:{sWp+3}], s{sT0} offen offset:{1024*i} {WF} lds')))
    def mid():
        e(f's_add_u32 m0, m0, 4096')
        e(f's_add_u32 s{sT0}, s{sT0}, 4096')
    items.append((8, mid))
    def last():
        e(f's_mov_b64 exec, s[{sMHALF}:{sMHALF+1}]')
        tok = e.vm(f'buffer_load_dwordx4 v{vWW}, s[{sWp}:{sWp+3}], s{sT0} offen {WF} lds')
        e('s_mov_b64 exec, -1')
        return tok
    items.append((16, last))
    return items

def run(items):
    tok = None
    for c, f in items:
        r = f()
        if r is not None: tok = r
    return tok

tok_tap = {}
tok_tap[0] = run(dma_tap(0))

e(f's_sub_u32 s{sX}, s4, 192\ns_subb_u32 s{sX+1}, s5, 0\ns_mov_b32 s{sX+2}, {XB+192}\ns_mov_b32 s{sX+3}, 0x20000')
e(f's_mov_b32 s{sO}, s8\ns_mov_b32 s{sO+1}, s9\ns_mov_b32 s{sO+2}, {XB}\ns_mov_b32 s{sO+3}, 0x20000')
if STAMP: e(f's_mov_b32 s{sWS}, s10\ns_mov_b32 s{sWS+1}, s11\ns_mov_b32 s{sWS+2}, 0x1000000\ns_mov_b32 s{sWS+3}, 0x20000')
e(f's_mul_i32 s{sOUT}, s{sTY}, {12*ROWB}')
e(f's_mul_i32 s{sT0}, s{sGRP}, {6*ROWB}')
e(f's_add_u32 s{sOUT}, s{sOUT}, s{sT0}')
e(f's_mul_i32 s{sT0}, s{sTX}, {48*192}')
e(f's_add_u32 s{sOUT}, s{sOUT}, s{sT0}')
e(f's_sub_u32 s{sROW}, s{sOUT}, {ROWB}')
e(f's_cmp_eq_u32 s{sH}, 0')
e(f's_cselect_b32 s{sMROW}, -1, 0xffffff')
e(f's_cselect_b32 s{sMROW+1}, -1, 0')
e(f's_mul_i32 s{sT0}, s{sH}, 320')
e(f's_cmp_eq_u32 s{sTX}, 0\ns_cselect_b32 s{sT1}, 12, 0')
e(f's_cmp_eq_u32 s{sTX}, 7\ns_cselect_b32 s3, 588, -1')
e(f's_mov_b32 s4, 1366\ns_mov_b32 s5, {BIG}')
for i in range(5):
    q = vRW + i
    e(f'v_add_u32 v{q}, s{sT0}, v0')
    if i: e(f'v_add_u32 v{q}, {64*i}, v{q}')
    e(f'v_mul_u32_u24 v{vTMP}, s4, v{q}')
    e(f'v_lshrrev_b32 v{vTMP}, 15, v{vTMP}')
    e(f'v_and_b32 v{vTMP}, 2, v{vTMP}')
    if i == 0: e(f'v_cmp_gt_u32 vcc, s{sT1}, v{q}')
    if i == 4: e(f'v_cmp_le_u32 vcc, s3, v{q}')
    e(f'v_xor_b32 v{q}, v{vTMP}, v{q}')
    e(f'v_lshlrev_b32 v{q}, 4, v{q}')
    if 0 < i < 4: e(f'v_subrev_u32 v{q}, {1024*i}, v{q}')
    if i in (0, 4):
        e(f'v_mov_b32 v{vTMP}, s5')
        e(f'v_cndmask_b32 v{q}, v{q}, v{vTMP}, vcc')

def dma_rows(ra, rb):
    items = []
    def head():
        selg(sT0, row_slot[ra], row_slot[rb])
    items.append((8, head))
    def head2():
        e(f's_add_u32 m0, s{sT0}, s{sW5120}')
        if rb - 6 == ra:
            e(f's_add_u32 s{sT1}, s{sROW}, {ra*ROWB}')
        else:
            selg(sT1, ra*ROWB, (rb-6)*ROWB)
            e(f's_add_u32 s{sT1}, s{sT1}, s{sROW}')
        if ra == 0:
            e(f's_or_b32 s{sT0}, s{sTY}, s{sGRP}')
            e(f's_cmp_eq_u32 s{sT0}, 0')
            e(f's_cselect_b32 s{sT1}, {BIG}, s{sT1}')
        if rb == 13:
            e(f's_add_u32 s{sT0}, s{sTY}, s{sGRP}')
            e(f's_cmp_eq_u32 s{sT0}, 32')
            e(f's_cselect_b32 s{sT1}, {BIG}, s{sT1}')
    items.append((8, head2))
    for i in range(4):
        items.append((8, lambda i=i: e.vm(f'buffer_load_dwordx4 v{vRW+i}, s[{sX}:{sX+3}], s{sT1} offen offset:{1024*i} {XF} lds')))
    items.append((4, lambda: e(f's_add_u32 m0, m0, 4096')))
    def last():
        e(f's_mov_b64 exec, s[{sMROW}:{sMROW+1}]')
        tok = e.vm(f'buffer_load_dwordx4 v{vRW+4}, s[{sX}:{sX+3}], s{sT1} offen {XF} lds')
        e('s_mov_b64 exec, -1')
        return tok
    items.append((16, last))
    return items

tok_row = {}
tok_row[0] = run(dma_rows(0, 6))
tok_tap[1] = run(dma_tap(1))
tok_tap[2] = run(dma_tap(2))
tok_row[1] = run(dma_rows(1, 7))
for t in (3, 4, 5): tok_tap[t] = run(dma_tap(t))
stamp()

e(f'v_and_b32 v{vCV}, 15, v0')
e(f'v_lshrrev_b32 v{vCV+1}, 4, v0')
for dx in range(3):
    e(f'v_add_u32 v{vTMP}, {dx}, v{vCV}')
    e(f'v_mul_u32_u24 v{vB0+dx}, 192, v{vTMP}')
    e(f'v_lshrrev_b32 v{vTMP}, 1, v{vTMP}')
    e(f'v_and_b32 v{vTMP}, 2, v{vTMP}')
    e(f'v_xor_b32 v{vTMP}, v{vTMP}, v{vCV+1}')
    e(f'v_lshl_add_u32 v{vB0+dx}, v{vTMP}, 4, v{vB0+dx}')
e(f'v_mul_u32_u24 v{vS4}, 192, v{vCV}')
e(f's_lshl_b32 s{sT0}, s{sH}, 5\ns_add_u32 s{sT0}, s{sT0}, 64')
e(f'v_lshl_add_u32 v{vS2}, v{vCV+1}, 3, v{vS4}')
e(f'v_add_u32 v{vS2}, s{sT0}, v{vS2}')
e(f's_lshl_b32 s{sT1}, s{sH}, 7')
e(f'v_lshl_add_u32 v{vS4}, v{vCV+1}, 4, v{vS4}')
e(f'v_add_u32 v{vS4}, s{sT1}, v{vS4}')
e(f'v_lshrrev_b32 v{vTMP}, 2, v{vCV}')
e(f'v_lshl_add_u32 v{vTMP}, v{vCV+1}, 3, v{vTMP}')
e(f'v_mul_u32_u24 v{vTMP}, 192, v{vTMP}')
e(f'v_and_b32 v{vCV}, 3, v{vCV}')
e(f'v_lshl_add_u32 v{vT0}, v{vCV}, 4, v{vTMP}')
e(f'v_add_u32 v{vT0}, s{sT1}, v{vT0}')
e(f'v_lshl_add_u32 v{vT0+1}, v{vCV}, 3, v{vTMP}')
e(f'v_add_u32 v{vT0+1}, s{sT0}, v{vT0+1}')

groups = []
for dx in range(3):
    for b in range(3): groups.append((0, b, [0], [dx]))
for b in range(3): groups.append((1, b, [0], [0, 1, 2]))
for b in range(3): groups.append((1, b, [1], [0, 1, 2]))
for b in range(3): groups.append((2, b, [1, 0], [0, 1, 2]))
for b in range(3): groups.append((2, b, [2], [0, 1, 2]))
for i in range(3, 8):
    dys = [dy for dy in (2, 1, 0) if 0 <= i - dy <= 5]
    for b in range(3): groups.append((i, b, dys, [0, 1, 2]))

mf = []
frags = []
started = set()
chain_end = {}
gstart = []
for gi, (i, b, dys, dxs) in enumerate(groups):
    gstart.append(len(mf))
    fl = []
    for dx in dxs:
        for k in range(3):
            fl.append(len(frags)); frags.append(dict(i=i, b=b, dx=dx, k=k, first=None, last=None))
    for dy in dys:
        o = i - dy
        for j in range(3):
            for F in fl:
                fr = frags[F]
                first = (o, b, j) not in started
                started.add((o, b, j))
                if fr['first'] is None: fr['first'] = len(mf)
                fr['last'] = len(mf)
                mf.append(dict(acc=acc(o, b, j), t=3*dy+fr['dx'], k=fr['k'], j=j, F=F, first=first))
            chain_end[(o, b, j)] = len(mf) - 1
assert len(mf) == 1458
def gidx(i, b, n=0):
    c = [g for g, x in enumerate(groups) if x[0] == i and x[1] == b]
    return c[n]

S1 = []
tokF = {}; tokW = {}
def add_frag(F):
    fr = frags[F]
    mn = frags[F - NS]['last'] + 1 if F >= NS else 0
    def fn():
        d = vF + 4 * (F % NS)
        tokF[F] = e.lds(f'ds_read_b128 {vr(d,4)}, v{vB+fr["dx"]} offset:{fr["b"]*3072+fr["k"]*64}')
    S1.append([mn, 8, fn, ('F', F)])
def add_rowbase(i):
    def f0():
        selg(3, row_slot[i], row_slot[i+6])
    S1.append([0, 8, f0, None])
    S1.append([0, 8, lambda: e(f'v_add_u32 v{vB}, s3, v{vB0}\nv_add_u32 v{vB+1}, s3, v{vB0+1}'), None])
    S1.append([0, 4, lambda: e(f'v_add_u32 v{vB+2}, s3, v{vB0+2}'), None])
def tap_items(t):
    it = []
    it.append([0, 8, lambda: e(f'v_add_u32 v{vT}, {tap_slot[t]}, v{vT0}\nv_add_u32 v{vT+1}, {tap_slot[t]}, v{vT0+1}'), None])
    for j in range(3):
        for k in range(3):
            p, r = wreg(t, k, j)
            for q in range(2):
                def fn(p=p, r=r, q=q, j=j, k=k):
                    a = vT if j < 2 else vT + 1
                    off = (32*k + 4*q) * 192 + (8*j if j < 2 else 0)
                    tk = e.lds(f'ds_read_b64_tr_b16 {vr(r+2*q,2,p)}, v{a} offset:{off}')
                    if q == 1: tokW[(t, k, j)] = tk
                it.append([0, 8, fn, ('W', t, k, j) if q == 1 else None])
    return it
def add_barrier(mn, vmtok):
    def fn():
        global p2
        while vmtok:
            try:
                vmtok(); break
            except KeyError:
                sys.stderr.write('dma flush\n'); S2[p2][2](); p2 += 1
        e.need(vm=vmtok() if vmtok else None, lds=e.lds_issued)
        e('s_barrier'); stamp(); bdone.add(mn + 1)
    S1.append([mn, 8, fn, None])
bdone = set()
def barrier_done(x): return x in bdone
S2 = []
def add_dma(items, store):
    for n, (c, f) in enumerate(items):
        if n == len(items) - 1:
            def g(f=f): store(f())
            S2.append([None, c, g])
        else: S2.append([None, c, f])
def release(mn):
    for it in S2:
        if it[0] is None: it[0] = mn
def merge(a, b):
    out = []; na, nb = len(a), len(b); ib = 0
    for ia, x in enumerate(a):
        out.append(x)
        while ib < nb and (ib + 1) * na <= (ia + 1) * nb: out.append(b[ib]); ib += 1
    return out + b[ib:]
def frag_items(Fs):
    n0 = len(S1)
    for F in Fs: add_frag(F)
    it = S1[n0:]; del S1[n0:]; return it
def gfr(g): return [F for F, fr in enumerate(frags) if gstart[g] <= fr['first'] < (gstart[g+1] if g+1 < len(groups) else 1e9)]

add_barrier(0, lambda: tok_row[0])
add_rowbase(0)
S1 += merge(tap_items(0), frag_items(gfr(0)))
S1 += frag_items(gfr(1))
add_barrier(0, lambda: tok_tap[1])
S1 += merge(tap_items(1), frag_items(gfr(2) + gfr(3) + gfr(4)))
add_barrier(gstart[3], lambda: tok_tap[2])
S1 += merge(tap_items(2), frag_items(gfr(5) + gfr(6) + gfr(7)))
S1 += frag_items(gfr(8))
b1 = gstart[8] + 3
add_barrier(b1, lambda: tok_tap[5])
for t in (6, 7, 8): add_dma(dma_tap(t), lambda tk, t=t: tok_tap.__setitem__(t, tk))
add_dma(dma_rows(2, 8), lambda tk: tok_row.__setitem__(2, tk))
release(b1 + 1)
add_rowbase(1)
g1 = gidx(1, 0)
S1 += frag_items(gfr(g1))
S1 += merge(tap_items(3) + tap_items(4) + tap_items(5), frag_items(gfr(g1+1) + gfr(g1+2)))
S1 += frag_items(gfr(g1+3) + gfr(g1+4) + gfr(g1+5))
b2 = gstart[g1+5] + 9
add_barrier(b2, lambda: tok_row[2])
add_dma(dma_rows(3, 9), lambda tk: tok_row.__setitem__(3, tk))
add_dma(dma_rows(4, 10), lambda tk: tok_row.__setitem__(4, tk))
add_dma(dma_rows(5, 11), lambda tk: tok_row.__setitem__(5, tk))
release(b2 + 1)
add_rowbase(2)
g2 = gidx(2, 0)
S1 += frag_items(gfr(g2))
S1 += merge(tap_items(6) + tap_items(7) + tap_items(8), frag_items(gfr(g2+1) + gfr(g2+2)))
S1 += frag_items(gfr(g2+3) + gfr(g2+4) + gfr(g2+5))
b3 = gstart[g2+5] + 9
add_barrier(b3, lambda: tok_row[3])
add_dma(dma_rows(12, 13), lambda tk: tok_row.__setitem__(6, tk))
release(b3 + 1)
for i in range(3, 8):
    if i == 4: add_barrier(gstart[gidx(3, 2)] + 9, lambda: tok_row[5])
    if i == 5: add_barrier(gstart[gidx(4, 2)] + 9, lambda: tok_row[6])
    add_rowbase(i)
    for b in range(3): S1 += frag_items(gfr(gidx(i, b)))
S3 = []
for o in range(6):
    for b in range(3):
        for j in range(3):
            mn = chain_end[(o, b, j)] + 9
            a = acc(o, b, j); d = vCV + 2 * j
            S3.append([mn, 8, lambda a=a, d=d: e(f'v_cvt_pk_bf16_f32 v{d}, v{a}, v{a+1}\nv_cvt_pk_bf16_f32 v{d+1}, v{a+2}, v{a+3}'), chain_end[(o, b, j)]])
            if j == 1:
                S3.append([mn, 4, lambda o=o, b=b: e(f's_add_u32 s43, s{sOUT}, {o*ROWB + b*3072}'), None])
                S3.append([mn, 24, lambda: e.vm(f'buffer_store_dwordx4 {vr(vCV,4)}, v{vS4}, s[{sO}:{sO+3}], s43 offen {SF}'), None])
            if j == 2:
                S3.append([mn, 16, lambda: e.vm(f'buffer_store_dwordx2 {vr(vCV+4,2)}, v{vS2}, s[{sO}:{sO+3}], s43 offen {SF}'), None])

p1 = p2 = p3 = 0
def flush1(key_present):
    global p1
    while not key_present():
        S1[p1][2](); p1 += 1
stalls = 0
last_dma = -100
DMA_GAP = 2
for m, M in enumerate(mf):
    F = M['F']; wk = (M['t'], M['k'], M['j'])
    if F not in tokF or wk not in tokW:
        if m: stalls += 1
        flush1(lambda: F in tokF and wk in tokW)
    e.need(lds=max(tokF[F], tokW[wk]))
    p, r = wreg(*wk); a = M['acc']; f = vF + 4 * (F % NS)
    e(f'v_mfma_f32_16x16x32_bf16 {vr(a,4)}, {vr(r,4,p)}, {vr(f,4)}, {"0" if M["first"] else vr(a,4)}')
    budget = 8
    if m + 1 < len(mf):
        N = mf[m+1]; nk = (N['t'], N['k'], N['j'])
        if N['F'] in tokF and nk in tokW and max(tokF[N['F']], tokW[nk]) > e.lds_done: budget -= 4
    while budget > 0:
        if p2 < len(S2) and S2[p2][0] <= m + 1 and barrier_done(S2[p2][0]) and m - last_dma >= DMA_GAP and (S2[p2][1] <= budget or budget == 8):
            budget -= S2[p2][1]; S2[p2][2](); p2 += 1; last_dma = m
        elif p1 < len(S1) and S1[p1][0] <= m + 1 and (S1[p1][1] <= budget):
            budget -= S1[p1][1]; S1[p1][2](); p1 += 1
        elif p3 < len(S3) and S3[p3][0] <= m + 1 and (S3[p3][1] <= budget or budget == 8):
            budget -= S3[p3][1]; S3[p3][2](); p3 += 1
        else: break
assert p1 == len(S1) and p2 == len(S2), (p1, len(S1), p2, len(S2))
stamp()
while p3 < len(S3):
    it = S3[p3]
    if it[3] is not None and it[3] > len(mf) - 9 and not getattr(e, 'padded', False):
        e('s_nop 7'); e.padded = True
    it[2](); p3 += 1
sys.stderr.write(f'forced flushes: {stalls}\n')
if STAMP:
    e('s_waitcnt vmcnt(0)')
    stamp()
    e('s_waitcnt lgkmcnt(0)')
    e(f's_lshl_b32 s3, s2, 2\ns_add_u32 s3, s3, s{sWAVE}\ns_lshl_b32 s3, s3, 8')
    e(f'v_mov_b32 v1, s3')
    for i in range(2 * nstamp[0]):
        e(f'v_mov_b32 v2, s{sST+i}\nbuffer_store_dword v2, v1, s[{sWS}:{sWS+3}], 0 offen offset:{4*i}')
    sys.stderr.write(f'nstamp {nstamp[0]}\n')
if SPIN:
    e('s_waitcnt vmcnt(0) lgkmcnt(0)')
    e(f's_add_u32 s90, s90, {SPIN*100}')
    e('Lspin:\ns_memrealtime s[92:93]\ns_waitcnt lgkmcnt(0)\ns_sub_u32 s92, s92, s90\ns_cmp_lt_i32 s92, 0\ns_cbranch_scc1 Lspin')
e('Lend:\ns_endpgm')
e(f'''.section .rodata,"a"
.p2align 6
.amdhsa_kernel {KN}
  .amdhsa_next_free_vgpr 512
  .amdhsa_next_free_sgpr 102
  .amdhsa_accum_offset 256
  .amdhsa_group_segment_fixed_size 0
  .amdhsa_kernarg_size 40
  .amdhsa_user_sgpr_count 2
  .amdhsa_user_sgpr_kernarg_segment_ptr 1
  .amdhsa_system_sgpr_workgroup_id_x 1
.end_amdhsa_kernel''')
sys.stdout.write(e.text())
```

```python
import sys
from asmlib import *

STAMP = 'stamp' in sys.argv
def opt(name, default):
    for a in sys.argv[1:]:
        if a.startswith(name + '='): return a.split('=', 1)[1]
    return default
XF = opt('xf', '').replace('_', ' '); WF = opt('wf', '').replace('_', ' '); SF = opt('sf', '').replace('_', ' ')
KN = 'standalone__winograd__vision_kernel'
ROWB = 73728
TAPB = 18432
XB = 28311552
BIG = 0x40000000
PITCH = 9600
W = [TAPB * i for i in range(6)]
A = [110592 + PITCH * i for i in range(5)]
row_slot = {0: A[0], 6: A[1], 1: A[2], 7: A[3], 2: A[4], 8: A[0],
            3: 55296, 9: 55296 + PITCH, 4: 55296 + 2 * PITCH, 10: 55296 + 3 * PITCH, 5: 55296 + 4 * PITCH,
            11: A[2], 12: 0, 13: PITCH}
tap_slot = {t: W[t % 6] for t in range(9)}
LDS = 158592

vLANE = 0
vB0 = 1
vB = 4
vRW = 7
vWW = 12
vT0 = 13
vT = 15
vS4 = 17; vS2 = 18
vTMP = 19
vCV = 20
vF = 28
NS = 13
vACC = vF + 4 * NS
vWT = vACC + 108
assert vWT + 68 == 256
def wreg(t, k, j):
    f = (t * 3 + k) * 3 + j
    if f < 64: return ('a', 4 * f)
    return ('v', vWT + 4 * (f - 64))
def acc(o, b, j):
    return vACC + ((o % 3) * 9 + b * 3 + j) * 4
sX, sWp, sO, sWS = 12, 16, 20, 24
sWAVE, sGRP, sH, sROW, sT0, sT1 = 28, 29, 30, 31, 32, 33
sMROW, sMHALF, sOUT = 34, 36, 38
sWV4608, sW5120 = 39, 40
sTX, sTY = 41, 42
sST = 44

e = Emitter()
nstamp = [0]
def stamp():
    if STAMP:
        e(f's_memrealtime s[{sST+2*nstamp[0]}:{sST+2*nstamp[0]+1}]'); nstamp[0] += 1

hdr = open('standalone__winograd__vision.s.ref').read().split('; Override')[0]
e(hdr.rstrip())
e(f'; @launch grid=(256,1,1) block=(256,1,1) lds={LDS}')
e('.amdgcn_target "amdgcn-amd-amdhsa--gfx950"')
e(f'.text\n.globl {KN}\n.p2align 8\n.type {KN},@function\n{KN}:')
e('s_cmp_ge_u32 s2, 256\ns_cbranch_scc1 Lend')
stamp()
SPIN = int(opt('spin', '0'))
if SPIN: e('s_memrealtime s[90:91]')
e('s_load_dwordx4 s[4:7], s[0:1], 0')
e('s_load_dwordx2 s[8:9], s[0:1], 16')
if STAMP: e('s_load_dwordx2 s[10:11], s[0:1], 32')
e(f'v_lshrrev_b32 v{vTMP}, 6, v0')
e(f'v_and_b32 v0, 63, v0')
e(f'v_readfirstlane_b32 s{sWAVE}, v{vTMP}')
e(f's_and_b32 s{sT0}, s2, 7')
e(f's_lshr_b32 s{sT1}, s2, 3')
e(f's_and_b32 s{sTX}, s{sT1}, 7')
e(f's_lshr_b32 s{sT1}, s{sT1}, 3')
e(f's_lshl_b32 s{sT0}, s{sT0}, 2')
e(f's_add_u32 s{sTY}, s{sT0}, s{sT1}')
e(f's_lshr_b32 s{sGRP}, s{sWAVE}, 1')
e(f's_and_b32 s{sH}, s{sWAVE}, 1')
e(f's_mul_i32 s{sWV4608}, s{sWAVE}, 4608')
e(f's_mul_i32 s{sW5120}, s{sH}, 5120')
e(f'v_lshlrev_b32 v{vWW}, 4, v0')
e(f'v_add_u32 v{vWW}, s{sWV4608}, v{vWW}')
e(f's_mov_b32 s{sMHALF}, -1\ns_mov_b32 s{sMHALF+1}, 0')
e(f's_mov_b32 s{sWp+2}, {9*TAPB}\ns_mov_b32 s{sWp+3}, 0x20000')
GSPIN = int(opt('gspin', '0'))
if GSPIN: e('s_load_dwordx2 s[80:81], s[0:1], 24')
e('s_waitcnt lgkmcnt(0)')
if GSPIN:
    e('s_mov_b32 s82, 256\ns_mov_b32 s83, 0x20000\ns_not_b32 s94, s90\nv_mov_b32 v20, s94\nv_mov_b32 v21, 0')
    e('s_mov_b64 exec, 1\nbuffer_atomic_umax v20, v21, s[80:83], 0 offen\ns_mov_b64 exec, -1\ns_waitcnt vmcnt(0)')
e(f's_mov_b32 s{sWp}, s6\ns_mov_b32 s{sWp+1}, s7')

def selg(d, a, b):
    e(f's_mul_i32 s{d}, s{sGRP}, {b-a}')
    e(f's_add_u32 s{d}, s{d}, {a}')
def dma_tap(t):
    items = []
    def head():
        e(f's_add_u32 m0, s{sWV4608}, {tap_slot[t]}')
        e(f's_mov_b32 s{sT0}, {t*TAPB}')
    items.append((8, head))
    for i in range(4):
        items.append((8, lambda i=i: e.vm(f'buffer_load_dwordx4 v{vWW}, s[{sWp}:{sWp+3}], s{sT0} offen offset:{1024*i} {WF} lds')))
    def mid():
        e(f's_add_u32 m0, m0, 4096')
        e(f's_add_u32 s{sT0}, s{sT0}, 4096')
    items.append((8, mid))
    def last():
        e(f's_mov_b64 exec, s[{sMHALF}:{sMHALF+1}]')
        tok = e.vm(f'buffer_load_dwordx4 v{vWW}, s[{sWp}:{sWp+3}], s{sT0} offen {WF} lds')
        e('s_mov_b64 exec, -1')
        return tok
    items.append((16, last))
    return items

def run(items):
    tok = None
    for c, f in items:
        r = f()
        if r is not None: tok = r
    return tok

tok_tap = {}
tok_tap[0] = run(dma_tap(0))

e(f's_sub_u32 s{sX}, s4, 192\ns_subb_u32 s{sX+1}, s5, 0\ns_mov_b32 s{sX+2}, {XB+192}\ns_mov_b32 s{sX+3}, 0x20000')
e(f's_mov_b32 s{sO}, s8\ns_mov_b32 s{sO+1}, s9\ns_mov_b32 s{sO+2}, {XB}\ns_mov_b32 s{sO+3}, 0x20000')
if STAMP: e(f's_mov_b32 s{sWS}, s10\ns_mov_b32 s{sWS+1}, s11\ns_mov_b32 s{sWS+2}, 0x1000000\ns_mov_b32 s{sWS+3}, 0x20000')
e(f's_mul_i32 s{sOUT}, s{sTY}, {12*ROWB}')
e(f's_mul_i32 s{sT0}, s{sGRP}, {6*ROWB}')
e(f's_add_u32 s{sOUT}, s{sOUT}, s{sT0}')
e(f's_mul_i32 s{sT0}, s{sTX}, {48*192}')
e(f's_add_u32 s{sOUT}, s{sOUT}, s{sT0}')
e(f's_sub_u32 s{sROW}, s{sOUT}, {ROWB}')
e(f's_cmp_eq_u32 s{sH}, 0')
e(f's_cselect_b32 s{sMROW}, -1, 0xffffff')
e(f's_cselect_b32 s{sMROW+1}, -1, 0')
e(f's_mul_i32 s{sT0}, s{sH}, 320')
e(f's_cmp_eq_u32 s{sTX}, 0\ns_cselect_b32 s{sT1}, 12, 0')
e(f's_cmp_eq_u32 s{sTX}, 7\ns_cselect_b32 s3, 588, -1')
e(f's_mov_b32 s4, 1366\ns_mov_b32 s5, {BIG}')
for i in range(5):
    q = vRW + i
    e(f'v_add_u32 v{q}, s{sT0}, v0')
    if i: e(f'v_add_u32 v{q}, {64*i}, v{q}')
    e(f'v_mul_u32_u24 v{vTMP}, s4, v{q}')
    e(f'v_lshrrev_b32 v{vTMP}, 15, v{vTMP}')
    e(f'v_and_b32 v{vTMP}, 2, v{vTMP}')
    if i == 0: e(f'v_cmp_gt_u32 vcc, s{sT1}, v{q}')
    if i == 4: e(f'v_cmp_le_u32 vcc, s3, v{q}')
    e(f'v_xor_b32 v{q}, v{vTMP}, v{q}')
    e(f'v_lshlrev_b32 v{q}, 4, v{q}')
    if 0 < i < 4: e(f'v_subrev_u32 v{q}, {1024*i}, v{q}')
    if i in (0, 4):
        e(f'v_mov_b32 v{vTMP}, s5')
        e(f'v_cndmask_b32 v{q}, v{q}, v{vTMP}, vcc')

def dma_rows(ra, rb):
    items = []
    def head():
        selg(sT0, row_slot[ra], row_slot[rb])
    items.append((8, head))
    def head2():
        e(f's_add_u32 m0, s{sT0}, s{sW5120}')
        if rb - 6 == ra:
            e(f's_add_u32 s{sT1}, s{sROW}, {ra*ROWB}')
        else:
            selg(sT1, ra*ROWB, (rb-6)*ROWB)
            e(f's_add_u32 s{sT1}, s{sT1}, s{sROW}')
        if ra == 0:
            e(f's_or_b32 s{sT0}, s{sTY}, s{sGRP}')
            e(f's_cmp_eq_u32 s{sT0}, 0')
            e(f's_cselect_b32 s{sT1}, {BIG}, s{sT1}')
        if rb == 13:
            e(f's_add_u32 s{sT0}, s{sTY}, s{sGRP}')
            e(f's_cmp_eq_u32 s{sT0}, 32')
            e(f's_cselect_b32 s{sT1}, {BIG}, s{sT1}')
    items.append((8, head2))
    for i in range(4):
        items.append((8, lambda i=i: e.vm(f'buffer_load_dwordx4 v{vRW+i}, s[{sX}:{sX+3}], s{sT1} offen offset:{1024*i} {XF} lds')))
    items.append((4, lambda: e(f's_add_u32 m0, m0, 4096')))
    def last():
        e(f's_mov_b64 exec, s[{sMROW}:{sMROW+1}]')
        tok = e.vm(f'buffer_load_dwordx4 v{vRW+4}, s[{sX}:{sX+3}], s{sT1} offen {XF} lds')
        e('s_mov_b64 exec, -1')
        return tok
    items.append((16, last))
    return items

tok_row = {}
tok_row[0] = run(dma_rows(0, 6))
tok_tap[1] = run(dma_tap(1))
tok_tap[2] = run(dma_tap(2))
tok_row[1] = run(dma_rows(1, 7))
for t in (3, 4, 5): tok_tap[t] = run(dma_tap(t))
stamp()

e(f'v_and_b32 v{vCV}, 15, v0')
e(f'v_lshrrev_b32 v{vCV+1}, 4, v0')
for dx in range(3):
    e(f'v_add_u32 v{vTMP}, {dx}, v{vCV}')
    e(f'v_mul_u32_u24 v{vB0+dx}, 192, v{vTMP}')
    e(f'v_lshrrev_b32 v{vTMP}, 1, v{vTMP}')
    e(f'v_and_b32 v{vTMP}, 2, v{vTMP}')
    e(f'v_xor_b32 v{vTMP}, v{vTMP}, v{vCV+1}')
    e(f'v_lshl_add_u32 v{vB0+dx}, v{vTMP}, 4, v{vB0+dx}')
e(f'v_mul_u32_u24 v{vS4}, 192, v{vCV}')
e(f's_lshl_b32 s{sT0}, s{sH}, 5\ns_add_u32 s{sT0}, s{sT0}, 64')
e(f'v_lshl_add_u32 v{vS2}, v{vCV+1}, 3, v{vS4}')
e(f'v_add_u32 v{vS2}, s{sT0}, v{vS2}')
e(f's_lshl_b32 s{sT1}, s{sH}, 7')
e(f'v_lshl_add_u32 v{vS4}, v{vCV+1}, 4, v{vS4}')
e(f'v_add_u32 v{vS4}, s{sT1}, v{vS4}')
e(f'v_lshrrev_b32 v{vTMP}, 2, v{vCV}')
e(f'v_lshl_add_u32 v{vTMP}, v{vCV+1}, 3, v{vTMP}')
e(f'v_mul_u32_u24 v{vTMP}, 192, v{vTMP}')
e(f'v_and_b32 v{vCV}, 3, v{vCV}')
e(f'v_lshl_add_u32 v{vT0}, v{vCV}, 4, v{vTMP}')
e(f'v_add_u32 v{vT0}, s{sT1}, v{vT0}')
e(f'v_lshl_add_u32 v{vT0+1}, v{vCV}, 3, v{vTMP}')
e(f'v_add_u32 v{vT0+1}, s{sT0}, v{vT0+1}')

groups = []
for dx in range(3):
    for b in range(3): groups.append((0, b, [0], [dx]))
for b in range(3): groups.append((1, b, [0], [0, 1, 2]))
for b in range(3): groups.append((1, b, [1], [0, 1, 2]))
for b in range(3): groups.append((2, b, [1, 0], [0, 1, 2]))
for b in range(3): groups.append((2, b, [2], [0, 1, 2]))
for i in range(3, 8):
    dys = [dy for dy in (2, 1, 0) if 0 <= i - dy <= 5]
    for b in range(3): groups.append((i, b, dys, [0, 1, 2]))

mf = []
frags = []
started = set()
chain_end = {}
gstart = []
for gi, (i, b, dys, dxs) in enumerate(groups):
    gstart.append(len(mf))
    fl = []
    for dx in dxs:
        for k in range(3):
            fl.append(len(frags)); frags.append(dict(i=i, b=b, dx=dx, k=k, first=None, last=None))
    for dy in dys:
        o = i - dy
        for j in range(3):
            for F in fl:
                fr = frags[F]
                first = (o, b, j) not in started
                started.add((o, b, j))
                if fr['first'] is None: fr['first'] = len(mf)
                fr['last'] = len(mf)
                mf.append(dict(acc=acc(o, b, j), t=3*dy+fr['dx'], k=fr['k'], j=j, F=F, first=first))
            chain_end[(o, b, j)] = len(mf) - 1
assert len(mf) == 1458
def gidx(i, b, n=0):
    c = [g for g, x in enumerate(groups) if x[0] == i and x[1] == b]
    return c[n]

S1 = []
tokF = {}; tokW = {}
def add_frag(F):
    fr = frags[F]
    mn = frags[F - NS]['last'] + 1 if F >= NS else 0
    def fn():
        d = vF + 4 * (F % NS)
        tokF[F] = e.lds(f'ds_read_b128 {vr(d,4)}, v{vB+fr["dx"]} offset:{fr["b"]*3072+fr["k"]*64}')
    S1.append([mn, 8, fn, ('F', F)])
def add_rowbase(i):
    def f0():
        selg(3, row_slot[i], row_slot[i+6])
    S1.append([0, 8, f0, None])
    S1.append([0, 8, lambda: e(f'v_add_u32 v{vB}, s3, v{vB0}\nv_add_u32 v{vB+1}, s3, v{vB0+1}'), None])
    S1.append([0, 4, lambda: e(f'v_add_u32 v{vB+2}, s3, v{vB0+2}'), None])
def tap_items(t):
    it = []
    it.append([0, 8, lambda: e(f'v_add_u32 v{vT}, {tap_slot[t]}, v{vT0}\nv_add_u32 v{vT+1}, {tap_slot[t]}, v{vT0+1}'), None])
    for j in range(3):
        for k in range(3):
            p, r = wreg(t, k, j)
            for q in range(2):
                def fn(p=p, r=r, q=q, j=j, k=k):
                    a = vT if j < 2 else vT + 1
                    off = (32*k + 4*q) * 192 + (8*j if j < 2 else 0)
                    tk = e.lds(f'ds_read_b64_tr_b16 {vr(r+2*q,2,p)}, v{a} offset:{off}')
                    if q == 1: tokW[(t, k, j)] = tk
                it.append([0, 8, fn, ('W', t, k, j) if q == 1 else None])
    return it
def add_barrier(mn, vmtok):
    def fn():
        global p2
        while vmtok:
            try:
                vmtok(); break
            except KeyError:
                sys.stderr.write('dma flush\n'); S2[p2][2](); p2 += 1
        e.need(vm=vmtok() if vmtok else None, lds=e.lds_issued)
        e('s_barrier'); stamp(); bdone.add(mn + 1)
    S1.append([mn, 8, fn, None])
bdone = set()
def barrier_done(x): return x in bdone
S2 = []
def add_dma(items, store):
    for n, (c, f) in enumerate(items):
        if n == len(items) - 1:
            def g(f=f): store(f())
            S2.append([None, c, g])
        else: S2.append([None, c, f])
def release(mn):
    for it in S2:
        if it[0] is None: it[0] = mn
def merge(a, b):
    out = []; na, nb = len(a), len(b); ib = 0
    for ia, x in enumerate(a):
        out.append(x)
        while ib < nb and (ib + 1) * na <= (ia + 1) * nb: out.append(b[ib]); ib += 1
    return out + b[ib:]
def frag_items(Fs):
    n0 = len(S1)
    for F in Fs: add_frag(F)
    it = S1[n0:]; del S1[n0:]; return it
def gfr(g): return [F for F, fr in enumerate(frags) if gstart[g] <= fr['first'] < (gstart[g+1] if g+1 < len(groups) else 1e9)]

add_barrier(0, lambda: tok_row[0])
add_rowbase(0)
S1 += merge(tap_items(0), frag_items(gfr(0)))
S1 += frag_items(gfr(1))
add_barrier(0, lambda: tok_tap[1])
S1 += merge(tap_items(1), frag_items(gfr(2) + gfr(3) + gfr(4)))
add_barrier(gstart[3], lambda: tok_tap[2])
S1 += merge(tap_items(2), frag_items(gfr(5) + gfr(6) + gfr(7)))
S1 += frag_items(gfr(8))
b1 = gstart[8] + 3
add_barrier(b1, lambda: tok_tap[5])
for t in (6, 7, 8): add_dma(dma_tap(t), lambda tk, t=t: tok_tap.__setitem__(t, tk))
add_dma(dma_rows(2, 8), lambda tk: tok_row.__setitem__(2, tk))
release(b1 + 1)
add_rowbase(1)
g1 = gidx(1, 0)
S1 += frag_items(gfr(g1))
S1 += merge(tap_items(3) + tap_items(4) + tap_items(5), frag_items(gfr(g1+1) + gfr(g1+2)))
S1 += frag_items(gfr(g1+3) + gfr(g1+4) + gfr(g1+5))
b2 = gstart[g1+5] + 9
add_barrier(b2, lambda: tok_row[2])
add_dma(dma_rows(3, 9), lambda tk: tok_row.__setitem__(3, tk))
add_dma(dma_rows(4, 10), lambda tk: tok_row.__setitem__(4, tk))
add_dma(dma_rows(5, 11), lambda tk: tok_row.__setitem__(5, tk))
release(b2 + 1)
add_rowbase(2)
g2 = gidx(2, 0)
S1 += frag_items(gfr(g2))
S1 += merge(tap_items(6) + tap_items(7) + tap_items(8), frag_items(gfr(g2+1) + gfr(g2+2)))
S1 += frag_items(gfr(g2+3) + gfr(g2+4) + gfr(g2+5))
b3 = gstart[g2+5] + 9
add_barrier(b3, lambda: tok_row[3])
add_dma(dma_rows(12, 13), lambda tk: tok_row.__setitem__(6, tk))
release(b3 + 1)
for i in range(3, 8):
    if i == 4: add_barrier(gstart[gidx(3, 2)] + 9, lambda: tok_row[5])
    if i == 5: add_barrier(gstart[gidx(4, 2)] + 9, lambda: tok_row[6])
    add_rowbase(i)
    for b in range(3): S1 += frag_items(gfr(gidx(i, b)))
S3 = []
for o in range(6):
    for b in range(3):
        for j in range(3):
            mn = chain_end[(o, b, j)] + 9
            a = acc(o, b, j); d = vCV + 2 * j
            S3.append([mn, 8, lambda a=a, d=d: e(f'v_cvt_pk_bf16_f32 v{d}, v{a}, v{a+1}\nv_cvt_pk_bf16_f32 v{d+1}, v{a+2}, v{a+3}'), chain_end[(o, b, j)]])
            if j == 1:
                S3.append([mn, 4, lambda o=o, b=b: e(f's_add_u32 s43, s{sOUT}, {o*ROWB + b*3072}'), None])
                S3.append([mn, 24, lambda: e.vm(f'buffer_store_dwordx4 {vr(vCV,4)}, v{vS4}, s[{sO}:{sO+3}], s43 offen {SF}'), None])
            if j == 2:
                S3.append([mn, 16, lambda: e.vm(f'buffer_store_dwordx2 {vr(vCV+4,2)}, v{vS2}, s[{sO}:{sO+3}], s43 offen {SF}'), None])

p1 = p2 = p3 = 0
def flush1(key_present):
    global p1
    while not key_present():
        S1[p1][2](); p1 += 1
stalls = 0
last_dma = -100
DMA_GAP = 2
for m, M in enumerate(mf):
    F = M['F']; wk = (M['t'], M['k'], M['j'])
    if F not in tokF or wk not in tokW:
        if m: stalls += 1
        flush1(lambda: F in tokF and wk in tokW)
    e.need(lds=max(tokF[F], tokW[wk]))
    p, r = wreg(*wk); a = M['acc']; f = vF + 4 * (F % NS)
    e(f'v_mfma_f32_16x16x32_bf16 {vr(a,4)}, {vr(r,4,p)}, {vr(f,4)}, {"0" if M["first"] else vr(a,4)}')
    budget = 8
    if m + 1 < len(mf):
        N = mf[m+1]; nk = (N['t'], N['k'], N['j'])
        if N['F'] in tokF and nk in tokW and max(tokF[N['F']], tokW[nk]) > e.lds_done: budget -= 4
    while budget > 0:
        if p2 < len(S2) and S2[p2][0] <= m + 1 and barrier_done(S2[p2][0]) and m - last_dma >= DMA_GAP and (S2[p2][1] <= budget or budget == 8):
            budget -= S2[p2][1]; S2[p2][2](); p2 += 1; last_dma = m
        elif p1 < len(S1) and S1[p1][0] <= m + 1 and (S1[p1][1] <= budget):
            budget -= S1[p1][1]; S1[p1][2](); p1 += 1
        elif p3 < len(S3) and S3[p3][0] <= m + 1 and (S3[p3][1] <= budget or budget == 8):
            budget -= S3[p3][1]; S3[p3][2](); p3 += 1
        else: break
assert p1 == len(S1) and p2 == len(S2), (p1, len(S1), p2, len(S2))
stamp()
while p3 < len(S3):
    it = S3[p3]
    if it[3] is not None and it[3] > len(mf) - 9 and not getattr(e, 'padded', False):
        e('s_nop 7'); e.padded = True
    it[2](); p3 += 1
sys.stderr.write(f'forced flushes: {stalls}\n')
if STAMP:
    e('s_waitcnt vmcnt(0)')
    stamp()
    e('s_waitcnt lgkmcnt(0)')
    e(f's_lshl_b32 s3, s2, 2\ns_add_u32 s3, s3, s{sWAVE}\ns_lshl_b32 s3, s3, 8')
    e(f'v_mov_b32 v1, s3')
    for i in range(2 * nstamp[0]):
        e(f'v_mov_b32 v2, s{sST+i}\nbuffer_store_dword v2, v1, s[{sWS}:{sWS+3}], 0 offen offset:{4*i}')
    sys.stderr.write(f'nstamp {nstamp[0]}\n')
if SPIN:
    e('s_waitcnt vmcnt(0) lgkmcnt(0)')
    if GSPIN:
        e('v_mov_b32 v21, 0\nbuffer_load_dword v20, v21, s[80:83], 0 offen sc0 sc1\ns_waitcnt vmcnt(0)\nv_readfirstlane_b32 s90, v20\ns_not_b32 s90, s90')
    e(f's_add_u32 s90, s90, {SPIN*100}')
    e('Lspin:\ns_memrealtime s[92:93]\ns_waitcnt lgkmcnt(0)\ns_sub_u32 s92, s92, s90\ns_cmp_lt_i32 s92, 0\ns_cbranch_scc1 Lspin')
e('Lend:\ns_endpgm')
e(f'''.section .rodata,"a"
.p2align 6
.amdhsa_kernel {KN}
  .amdhsa_next_free_vgpr 512
  .amdhsa_next_free_sgpr 102
  .amdhsa_accum_offset 256
  .amdhsa_group_segment_fixed_size 0
  .amdhsa_kernarg_size 40
  .amdhsa_user_sgpr_count 2
  .amdhsa_user_sgpr_kernarg_segment_ptr 1
  .amdhsa_system_sgpr_workgroup_id_x 1
.end_amdhsa_kernel''')
sys.stdout.write(e.text())
```

```python
import sys
from asmlib import *

STAMP = 'stamp' in sys.argv
def opt(name, default):
    for a in sys.argv[1:]:
        if a.startswith(name + '='): return a.split('=', 1)[1]
    return default
XF = opt('xf', '').replace('_', ' '); WF = opt('wf', '').replace('_', ' '); SF = opt('sf', '').replace('_', ' ')
KN = 'standalone__winograd__vision_kernel'
ROWB = 73728
TAPB = 18432
XB = 28311552
BIG = 0x40000000
PITCH = 9600
W = [TAPB * i for i in range(6)]
A = [110592 + PITCH * i for i in range(5)]
row_slot = {0: A[0], 6: A[1], 1: A[2], 7: A[3], 2: A[4], 8: A[0],
            3: 55296, 9: 55296 + PITCH, 4: 55296 + 2 * PITCH, 10: 55296 + 3 * PITCH, 5: 55296 + 4 * PITCH,
            11: A[2], 12: 0, 13: PITCH}
tap_slot = {t: W[t % 6] for t in range(9)}
LDS = 158592

vLANE = 0
vB0 = 1
vB = 4
vRW = 7
vWW = 12
vT0 = 13
vT = 15
vS4 = 17; vS2 = 18
vTMP = 19
vCV = 20
vF = 28
NS = 13
vACC = vF + 4 * NS
vWT = vACC + 108
assert vWT + 68 == 256
def wreg(t, k, j):
    f = (t * 3 + k) * 3 + j
    if f < 64: return ('a', 4 * f)
    return ('v', vWT + 4 * (f - 64))
def acc(o, b, j):
    return vACC + ((o % 3) * 9 + b * 3 + j) * 4
sX, sWp, sO, sWS = 12, 16, 20, 24
sWAVE, sGRP, sH, sROW, sT0, sT1 = 28, 29, 30, 31, 32, 33
sMROW, sMHALF, sOUT = 34, 36, 38
sWV4608, sW5120 = 39, 40
sTX, sTY = 41, 42
sST = 44

e = Emitter()
nstamp = [0]
PROBE = int(opt('probe', '-1'))
pcount = [0]
def stamp():
    if pcount[0] == PROBE: e('s_memrealtime s[96:97]')
    pcount[0] += 1
    if STAMP:
        e(f's_memrealtime s[{sST+2*nstamp[0]}:{sST+2*nstamp[0]+1}]'); nstamp[0] += 1

hdr = open('standalone__winograd__vision.s.ref').read().split('; Override')[0]
e(hdr.rstrip())
e(f'; @launch grid=(256,1,1) block=(256,1,1) lds={LDS}')
e('.amdgcn_target "amdgcn-amd-amdhsa--gfx950"')
e(f'.text\n.globl {KN}\n.p2align 8\n.type {KN},@function\n{KN}:')
e('s_cmp_ge_u32 s2, 256\ns_cbranch_scc1 Lend')
stamp()
SPIN = int(opt('spin', '0'))
if SPIN: e('s_memrealtime s[90:91]')
e('s_load_dwordx4 s[4:7], s[0:1], 0')
e('s_load_dwordx2 s[8:9], s[0:1], 16')
if STAMP: e('s_load_dwordx2 s[10:11], s[0:1], 32')
e(f'v_lshrrev_b32 v{vTMP}, 6, v0')
e(f'v_and_b32 v0, 63, v0')
e(f'v_readfirstlane_b32 s{sWAVE}, v{vTMP}')
e(f's_and_b32 s{sT0}, s2, 7')
e(f's_lshr_b32 s{sT1}, s2, 3')
e(f's_and_b32 s{sTX}, s{sT1}, 7')
e(f's_lshr_b32 s{sT1}, s{sT1}, 3')
e(f's_lshl_b32 s{sT0}, s{sT0}, 2')
e(f's_add_u32 s{sTY}, s{sT0}, s{sT1}')
e(f's_lshr_b32 s{sGRP}, s{sWAVE}, 1')
e(f's_and_b32 s{sH}, s{sWAVE}, 1')
e(f's_mul_i32 s{sWV4608}, s{sWAVE}, 4608')
e(f's_mul_i32 s{sW5120}, s{sH}, 5120')
e(f'v_lshlrev_b32 v{vWW}, 4, v0')
e(f'v_add_u32 v{vWW}, s{sWV4608}, v{vWW}')
e(f's_mov_b32 s{sMHALF}, -1\ns_mov_b32 s{sMHALF+1}, 0')
e(f's_mov_b32 s{sWp+2}, {9*TAPB}\ns_mov_b32 s{sWp+3}, 0x20000')
GSPIN = int(opt('gspin', '0'))
if GSPIN: e('s_load_dwordx2 s[80:81], s[0:1], 24')
e('s_waitcnt lgkmcnt(0)')
if GSPIN:
    e('s_mov_b32 s82, 256\ns_mov_b32 s83, 0x20000\ns_not_b32 s94, s90\nv_mov_b32 v20, s94\nv_mov_b32 v21, 0')
    e('s_mov_b64 exec, 1\nbuffer_atomic_umax v20, v21, s[80:83], 0 offen\ns_mov_b64 exec, -1\ns_waitcnt vmcnt(0)')
e(f's_mov_b32 s{sWp}, s6\ns_mov_b32 s{sWp+1}, s7')

def selg(d, a, b):
    e(f's_mul_i32 s{d}, s{sGRP}, {b-a}')
    e(f's_add_u32 s{d}, s{d}, {a}')
def dma_tap(t):
    items = []
    def head():
        e(f's_add_u32 m0, s{sWV4608}, {tap_slot[t]}')
        e(f's_mov_b32 s{sT0}, {t*TAPB}')
    items.append((8, head))
    for i in range(4):
        items.append((8, lambda i=i: e.vm(f'buffer_load_dwordx4 v{vWW}, s[{sWp}:{sWp+3}], s{sT0} offen offset:{1024*i} {WF} lds')))
    def mid():
        e(f's_add_u32 m0, m0, 4096')
        e(f's_add_u32 s{sT0}, s{sT0}, 4096')
    items.append((8, mid))
    def last():
        e(f's_mov_b64 exec, s[{sMHALF}:{sMHALF+1}]')
        tok = e.vm(f'buffer_load_dwordx4 v{vWW}, s[{sWp}:{sWp+3}], s{sT0} offen {WF} lds')
        e('s_mov_b64 exec, -1')
        return tok
    items.append((16, last))
    return items

def run(items):
    tok = None
    for c, f in items:
        r = f()
        if r is not None: tok = r
    return tok

tok_tap = {}
tok_tap[0] = run(dma_tap(0))

e(f's_sub_u32 s{sX}, s4, 192\ns_subb_u32 s{sX+1}, s5, 0\ns_mov_b32 s{sX+2}, {XB+192}\ns_mov_b32 s{sX+3}, 0x20000')
e(f's_mov_b32 s{sO}, s8\ns_mov_b32 s{sO+1}, s9\ns_mov_b32 s{sO+2}, {XB}\ns_mov_b32 s{sO+3}, 0x20000')
if STAMP: e(f's_mov_b32 s{sWS}, s10\ns_mov_b32 s{sWS+1}, s11\ns_mov_b32 s{sWS+2}, 0x1000000\ns_mov_b32 s{sWS+3}, 0x20000')
e(f's_mul_i32 s{sOUT}, s{sTY}, {12*ROWB}')
e(f's_mul_i32 s{sT0}, s{sGRP}, {6*ROWB}')
e(f's_add_u32 s{sOUT}, s{sOUT}, s{sT0}')
e(f's_mul_i32 s{sT0}, s{sTX}, {48*192}')
e(f's_add_u32 s{sOUT}, s{sOUT}, s{sT0}')
e(f's_sub_u32 s{sROW}, s{sOUT}, {ROWB}')
e(f's_cmp_eq_u32 s{sH}, 0')
e(f's_cselect_b32 s{sMROW}, -1, 0xffffff')
e(f's_cselect_b32 s{sMROW+1}, -1, 0')
e(f's_mul_i32 s{sT0}, s{sH}, 320')
e(f's_cmp_eq_u32 s{sTX}, 0\ns_cselect_b32 s{sT1}, 12, 0')
e(f's_cmp_eq_u32 s{sTX}, 7\ns_cselect_b32 s3, 588, -1')
e(f's_mov_b32 s4, 1366\ns_mov_b32 s5, {BIG}')
for i in range(5):
    q = vRW + i
    e(f'v_add_u32 v{q}, s{sT0}, v0')
    if i: e(f'v_add_u32 v{q}, {64*i}, v{q}')
    e(f'v_mul_u32_u24 v{vTMP}, s4, v{q}')
    e(f'v_lshrrev_b32 v{vTMP}, 15, v{vTMP}')
    e(f'v_and_b32 v{vTMP}, 2, v{vTMP}')
    if i == 0: e(f'v_cmp_gt_u32 vcc, s{sT1}, v{q}')
    if i == 4: e(f'v_cmp_le_u32 vcc, s3, v{q}')
    e(f'v_xor_b32 v{q}, v{vTMP}, v{q}')
    e(f'v_lshlrev_b32 v{q}, 4, v{q}')
    if 0 < i < 4: e(f'v_subrev_u32 v{q}, {1024*i}, v{q}')
    if i in (0, 4):
        e(f'v_mov_b32 v{vTMP}, s5')
        e(f'v_cndmask_b32 v{q}, v{q}, v{vTMP}, vcc')

def dma_rows(ra, rb):
    items = []
    def head():
        selg(sT0, row_slot[ra], row_slot[rb])
    items.append((8, head))
    def head2():
        e(f's_add_u32 m0, s{sT0}, s{sW5120}')
        if rb - 6 == ra:
            e(f's_add_u32 s{sT1}, s{sROW}, {ra*ROWB}')
        else:
            selg(sT1, ra*ROWB, (rb-6)*ROWB)
            e(f's_add_u32 s{sT1}, s{sT1}, s{sROW}')
        if ra == 0:
            e(f's_or_b32 s{sT0}, s{sTY}, s{sGRP}')
            e(f's_cmp_eq_u32 s{sT0}, 0')
            e(f's_cselect_b32 s{sT1}, {BIG}, s{sT1}')
        if rb == 13:
            e(f's_add_u32 s{sT0}, s{sTY}, s{sGRP}')
            e(f's_cmp_eq_u32 s{sT0}, 32')
            e(f's_cselect_b32 s{sT1}, {BIG}, s{sT1}')
    items.append((8, head2))
    for i in range(4):
        items.append((8, lambda i=i: e.vm(f'buffer_load_dwordx4 v{vRW+i}, s[{sX}:{sX+3}], s{sT1} offen offset:{1024*i} {XF} lds')))
    items.append((4, lambda: e(f's_add_u32 m0, m0, 4096')))
    def last():
        e(f's_mov_b64 exec, s[{sMROW}:{sMROW+1}]')
        tok = e.vm(f'buffer_load_dwordx4 v{vRW+4}, s[{sX}:{sX+3}], s{sT1} offen {XF} lds')
        e('s_mov_b64 exec, -1')
        return tok
    items.append((16, last))
    return items

tok_row = {}
tok_row[0] = run(dma_rows(0, 6))
tok_tap[1] = run(dma_tap(1))
tok_tap[2] = run(dma_tap(2))
tok_row[1] = run(dma_rows(1, 7))
for t in (3, 4, 5): tok_tap[t] = run(dma_tap(t))
stamp()

e(f'v_and_b32 v{vCV}, 15, v0')
e(f'v_lshrrev_b32 v{vCV+1}, 4, v0')
for dx in range(3):
    e(f'v_add_u32 v{vTMP}, {dx}, v{vCV}')
    e(f'v_mul_u32_u24 v{vB0+dx}, 192, v{vTMP}')
    e(f'v_lshrrev_b32 v{vTMP}, 1, v{vTMP}')
    e(f'v_and_b32 v{vTMP}, 2, v{vTMP}')
    e(f'v_xor_b32 v{vTMP}, v{vTMP}, v{vCV+1}')
    e(f'v_lshl_add_u32 v{vB0+dx}, v{vTMP}, 4, v{vB0+dx}')
e(f'v_mul_u32_u24 v{vS4}, 192, v{vCV}')
e(f's_lshl_b32 s{sT0}, s{sH}, 5\ns_add_u32 s{sT0}, s{sT0}, 64')
e(f'v_lshl_add_u32 v{vS2}, v{vCV+1}, 3, v{vS4}')
e(f'v_add_u32 v{vS2}, s{sT0}, v{vS2}')
e(f's_lshl_b32 s{sT1}, s{sH}, 7')
e(f'v_lshl_add_u32 v{vS4}, v{vCV+1}, 4, v{vS4}')
e(f'v_add_u32 v{vS4}, s{sT1}, v{vS4}')
e(f'v_lshrrev_b32 v{vTMP}, 2, v{vCV}')
e(f'v_lshl_add_u32 v{vTMP}, v{vCV+1}, 3, v{vTMP}')
e(f'v_mul_u32_u24 v{vTMP}, 192, v{vTMP}')
e(f'v_and_b32 v{vCV}, 3, v{vCV}')
e(f'v_lshl_add_u32 v{vT0}, v{vCV}, 4, v{vTMP}')
e(f'v_add_u32 v{vT0}, s{sT1}, v{vT0}')
e(f'v_lshl_add_u32 v{vT0+1}, v{vCV}, 3, v{vTMP}')
e(f'v_add_u32 v{vT0+1}, s{sT0}, v{vT0+1}')

groups = []
for dx in range(3):
    for b in range(3): groups.append((0, b, [0], [dx]))
for b in range(3): groups.append((1, b, [0], [0, 1, 2]))
for b in range(3): groups.append((1, b, [1], [0, 1, 2]))
for b in range(3): groups.append((2, b, [1, 0], [0, 1, 2]))
for b in range(3): groups.append((2, b, [2], [0, 1, 2]))
for i in range(3, 8):
    dys = [dy for dy in (2, 1, 0) if 0 <= i - dy <= 5]
    for b in range(3): groups.append((i, b, dys, [0, 1, 2]))

mf = []
frags = []
started = set()
chain_end = {}
gstart = []
for gi, (i, b, dys, dxs) in enumerate(groups):
    gstart.append(len(mf))
    fl = []
    for dx in dxs:
        for k in range(3):
            fl.append(len(frags)); frags.append(dict(i=i, b=b, dx=dx, k=k, first=None, last=None))
    for dy in dys:
        o = i - dy
        for j in range(3):
            for F in fl:
                fr = frags[F]
                first = (o, b, j) not in started
                started.add((o, b, j))
                if fr['first'] is None: fr['first'] = len(mf)
                fr['last'] = len(mf)
                mf.append(dict(acc=acc(o, b, j), t=3*dy+fr['dx'], k=fr['k'], j=j, F=F, first=first))
            chain_end[(o, b, j)] = len(mf) - 1
assert len(mf) == 1458
def gidx(i, b, n=0):
    c = [g for g, x in enumerate(groups) if x[0] == i and x[1] == b]
    return c[n]

S1 = []
tokF = {}; tokW = {}
def add_frag(F):
    fr = frags[F]
    mn = frags[F - NS]['last'] + 1 if F >= NS else 0
    def fn():
        d = vF + 4 * (F % NS)
        tokF[F] = e.lds(f'ds_read_b128 {vr(d,4)}, v{vB+fr["dx"]} offset:{fr["b"]*3072+fr["k"]*64}')
    S1.append([mn, 8, fn, ('F', F)])
def add_rowbase(i):
    def f0():
        selg(3, row_slot[i], row_slot[i+6])
    S1.append([0, 8, f0, None])
    S1.append([0, 8, lambda: e(f'v_add_u32 v{vB}, s3, v{vB0}\nv_add_u32 v{vB+1}, s3, v{vB0+1}'), None])
    S1.append([0, 4, lambda: e(f'v_add_u32 v{vB+2}, s3, v{vB0+2}'), None])
def tap_items(t):
    it = []
    it.append([0, 8, lambda: e(f'v_add_u32 v{vT}, {tap_slot[t]}, v{vT0}\nv_add_u32 v{vT+1}, {tap_slot[t]}, v{vT0+1}'), None])
    for j in range(3):
        for k in range(3):
            p, r = wreg(t, k, j)
            for q in range(2):
                def fn(p=p, r=r, q=q, j=j, k=k):
                    a = vT if j < 2 else vT + 1
                    off = (32*k + 4*q) * 192 + (8*j if j < 2 else 0)
                    tk = e.lds(f'ds_read_b64_tr_b16 {vr(r+2*q,2,p)}, v{a} offset:{off}')
                    if q == 1: tokW[(t, k, j)] = tk
                it.append([0, 8, fn, ('W', t, k, j) if q == 1 else None])
    return it
def add_barrier(mn, vmtok):
    def fn():
        global p2
        while vmtok:
            try:
                vmtok(); break
            except KeyError:
                sys.stderr.write('dma flush\n'); S2[p2][2](); p2 += 1
        e.need(vm=vmtok() if vmtok else None, lds=e.lds_issued)
        e('s_barrier'); stamp(); bdone.add(mn + 1)
    S1.append([mn, 8, fn, None])
bdone = set()
def barrier_done(x): return x in bdone
S2 = []
def add_dma(items, store):
    for n, (c, f) in enumerate(items):
        if n == len(items) - 1:
            def g(f=f): store(f())
            S2.append([None, c, g])
        else: S2.append([None, c, f])
def release(mn):
    for it in S2:
        if it[0] is None: it[0] = mn
def merge(a, b):
    out = []; na, nb = len(a), len(b); ib = 0
    for ia, x in enumerate(a):
        out.append(x)
        while ib < nb and (ib + 1) * na <= (ia + 1) * nb: out.append(b[ib]); ib += 1
    return out + b[ib:]
def frag_items(Fs):
    n0 = len(S1)
    for F in Fs: add_frag(F)
    it = S1[n0:]; del S1[n0:]; return it
def gfr(g): return [F for F, fr in enumerate(frags) if gstart[g] <= fr['first'] < (gstart[g+1] if g+1 < len(groups) else 1e9)]

add_barrier(0, lambda: tok_row[0])
add_rowbase(0)
S1 += merge(tap_items(0), frag_items(gfr(0)))
S1 += frag_items(gfr(1))
add_barrier(0, lambda: tok_tap[1])
S1 += merge(tap_items(1), frag_items(gfr(2) + gfr(3) + gfr(4)))
add_barrier(gstart[3], lambda: tok_tap[2])
S1 += merge(tap_items(2), frag_items(gfr(5) + gfr(6) + gfr(7)))
S1 += frag_items(gfr(8))
b1 = gstart[8] + 3
add_barrier(b1, lambda: tok_tap[5])
for t in (6, 7, 8): add_dma(dma_tap(t), lambda tk, t=t: tok_tap.__setitem__(t, tk))
add_dma(dma_rows(2, 8), lambda tk: tok_row.__setitem__(2, tk))
release(b1 + 1)
add_rowbase(1)
g1 = gidx(1, 0)
S1 += frag_items(gfr(g1))
S1 += merge(tap_items(3) + tap_items(4) + tap_items(5), frag_items(gfr(g1+1) + gfr(g1+2)))
S1 += frag_items(gfr(g1+3) + gfr(g1+4) + gfr(g1+5))
b2 = gstart[g1+5] + 9
add_barrier(b2, lambda: tok_row[2])
add_dma(dma_rows(3, 9), lambda tk: tok_row.__setitem__(3, tk))
add_dma(dma_rows(4, 10), lambda tk: tok_row.__setitem__(4, tk))
add_dma(dma_rows(5, 11), lambda tk: tok_row.__setitem__(5, tk))
release(b2 + 1)
add_rowbase(2)
g2 = gidx(2, 0)
S1 += frag_items(gfr(g2))
S1 += merge(tap_items(6) + tap_items(7) + tap_items(8), frag_items(gfr(g2+1) + gfr(g2+2)))
S1 += frag_items(gfr(g2+3) + gfr(g2+4) + gfr(g2+5))
b3 = gstart[g2+5] + 9
add_barrier(b3, lambda: tok_row[3])
add_dma(dma_rows(12, 13), lambda tk: tok_row.__setitem__(6, tk))
release(b3 + 1)
for i in range(3, 8):
    if i == 4: add_barrier(gstart[gidx(3, 2)] + 9, lambda: tok_row[5])
    if i == 5: add_barrier(gstart[gidx(4, 2)] + 9, lambda: tok_row[6])
    add_rowbase(i)
    for b in range(3): S1 += frag_items(gfr(gidx(i, b)))
S3 = []
for o in range(6):
    for b in range(3):
        for j in range(3):
            mn = chain_end[(o, b, j)] + 9
            a = acc(o, b, j); d = vCV + 2 * j
            S3.append([mn, 8, lambda a=a, d=d: e(f'v_cvt_pk_bf16_f32 v{d}, v{a}, v{a+1}\nv_cvt_pk_bf16_f32 v{d+1}, v{a+2}, v{a+3}'), chain_end[(o, b, j)]])
            if j == 1:
                S3.append([mn, 4, lambda o=o, b=b: e(f's_add_u32 s43, s{sOUT}, {o*ROWB + b*3072}'), None])
                S3.append([mn, 24, lambda: e.vm(f'buffer_store_dwordx4 {vr(vCV,4)}, v{vS4}, s[{sO}:{sO+3}], s43 offen {SF}'), None])
            if j == 2:
                S3.append([mn, 16, lambda: e.vm(f'buffer_store_dwordx2 {vr(vCV+4,2)}, v{vS2}, s[{sO}:{sO+3}], s43 offen {SF}'), None])

p1 = p2 = p3 = 0
def flush1(key_present):
    global p1
    while not key_present():
        S1[p1][2](); p1 += 1
stalls = 0
last_dma = -100
DMA_GAP = 2
for m, M in enumerate(mf):
    F = M['F']; wk = (M['t'], M['k'], M['j'])
    if F not in tokF or wk not in tokW:
        if m: stalls += 1
        flush1(lambda: F in tokF and wk in tokW)
    e.need(lds=max(tokF[F], tokW[wk]))
    p, r = wreg(*wk); a = M['acc']; f = vF + 4 * (F % NS)
    e(f'v_mfma_f32_16x16x32_bf16 {vr(a,4)}, {vr(r,4,p)}, {vr(f,4)}, {"0" if M["first"] else vr(a,4)}')
    budget = 8
    if m + 1 < len(mf):
        N = mf[m+1]; nk = (N['t'], N['k'], N['j'])
        if N['F'] in tokF and nk in tokW and max(tokF[N['F']], tokW[nk]) > e.lds_done: budget -= 4
    while budget > 0:
        if p2 < len(S2) and S2[p2][0] <= m + 1 and barrier_done(S2[p2][0]) and m - last_dma >= DMA_GAP and (S2[p2][1] <= budget or budget == 8):
            budget -= S2[p2][1]; S2[p2][2](); p2 += 1; last_dma = m
        elif p1 < len(S1) and S1[p1][0] <= m + 1 and (S1[p1][1] <= budget):
            budget -= S1[p1][1]; S1[p1][2](); p1 += 1
        elif p3 < len(S3) and S3[p3][0] <= m + 1 and (S3[p3][1] <= budget or budget == 8):
            budget -= S3[p3][1]; S3[p3][2](); p3 += 1
        else: break
assert p1 == len(S1) and p2 == len(S2), (p1, len(S1), p2, len(S2))
stamp()
while p3 < len(S3):
    it = S3[p3]
    if it[3] is not None and it[3] > len(mf) - 9 and not getattr(e, 'padded', False):
        e('s_nop 7'); e.padded = True
    it[2](); p3 += 1
sys.stderr.write(f'forced flushes: {stalls}\n')
if STAMP:
    e('s_waitcnt vmcnt(0)')
    stamp()
    e('s_waitcnt lgkmcnt(0)')
    e(f's_lshl_b32 s3, s2, 2\ns_add_u32 s3, s3, s{sWAVE}\ns_lshl_b32 s3, s3, 8')
    e(f'v_mov_b32 v1, s3')
    for i in range(2 * nstamp[0]):
        e(f'v_mov_b32 v2, s{sST+i}\nbuffer_store_dword v2, v1, s[{sWS}:{sWS+3}], 0 offen offset:{4*i}')
    sys.stderr.write(f'nstamp {nstamp[0]}\n')
if SPIN:
    e('s_waitcnt vmcnt(0) lgkmcnt(0)')
    if GSPIN:
        e('v_mov_b32 v21, 0\nbuffer_load_dword v20, v21, s[80:83], 0 offen sc0 sc1\ns_waitcnt vmcnt(0)\nv_readfirstlane_b32 s90, v20\ns_not_b32 s90, s90')
    if PROBE >= 0:
        e('s_sub_u32 s96, s96, s90\ns_lshl_b32 s96, s96, 2\ns_add_u32 s90, s90, s96')
    e(f's_add_u32 s90, s90, {SPIN*100}')
    e('Lspin:\ns_memrealtime s[92:93]\ns_waitcnt lgkmcnt(0)\ns_sub_u32 s92, s92, s90\ns_cmp_lt_i32 s92, 0\ns_cbranch_scc1 Lspin')
e('Lend:\ns_endpgm')
e(f'''.section .rodata,"a"
.p2align 6
.amdhsa_kernel {KN}
  .amdhsa_next_free_vgpr 512
  .amdhsa_next_free_sgpr 102
  .amdhsa_accum_offset 256
  .amdhsa_group_segment_fixed_size 0
  .amdhsa_kernarg_size 40
  .amdhsa_user_sgpr_count 2
  .amdhsa_user_sgpr_kernarg_segment_ptr 1
  .amdhsa_system_sgpr_workgroup_id_x 1
.end_amdhsa_kernel''')
sys.stdout.write(e.text())
```

```python
class Stream:
    def __init__(self, name, mingap=0):
        self.items = []; self.p = 0; self.name = name; self.mingap = mingap; self.last = -999; self.urgent = True
    def add(self, fn, cost, kind, rel=0, dl=10**9, cond=None, paced=True):
        it = dict(fn=fn, cost=cost, kind=kind, rel=rel, dl=dl, cond=cond, paced=paced)
        self.items.append(it); return it
    def finalize(self):
        d = 10**9
        for it in reversed(self.items):
            step = max(1 if it['cost'] >= 8 else 0.5, self.mingap if it['paced'] else 0)
            d = min(it['dl'], d - step); it['edl'] = d
    def head(self): return self.items[self.p] if self.p < len(self.items) else None
    def pop(self, m):
        it = self.items[self.p]; self.p += 1
        if it['paced']: self.last = m
        it['fn'](); return it
    def ready(self, m):
        it = self.head()
        if it is None or it['rel'] > m + 1: return False
        if it['cond'] and not it['cond'](): return False
        if it['paced'] and m - self.last < self.mingap: return False
        return True

def fill_gap(streams, m, budget=12, vbudget=8, maxover=1):
    used = 0; vused = 0; n = 0
    while True:
        c = [s for s in streams if s.ready(m)]
        c = [s for s in c if (used + s.head()['cost'] <= budget and (s.head()['kind'] != 'v' or vused + s.head()['cost'] <= vbudget)) or (n == 0 and budget >= 12)]
        if not c: break
        c.sort(key=lambda s: s.head()['edl'])
        pick = c[0]
        if n == 0 and pick.head()['kind'] == 'v':
            alt = [s for s in c[1:] if s.head()['kind'] != 'v' and s.head()['cost'] + pick.head()['cost'] <= budget]
            if alt: pick = alt[0]
        it = pick.pop(m); used += it['cost']; n += 1
        if it['kind'] == 'v': vused += it['cost']
    for _ in range(maxover):
        c = [s for s in streams if s.ready(m) and s.head()['edl'] <= m and s.urgent]
        if not c: break
        c.sort(key=lambda s: s.head()['edl'])
        it = c[0].pop(m); used += it['cost']
    return used
```

```python
import sys
from asmlib import *

STAMP = 'stamp' in sys.argv
def opt(name, default):
    for a in sys.argv[1:]:
        if a.startswith(name + '='): return a.split('=', 1)[1]
    return default
XF = opt('xf', '').replace('_', ' '); WF = opt('wf', '').replace('_', ' '); SF = opt('sf', '').replace('_', ' ')
KN = 'standalone__winograd__vision_kernel'
ROWB = 73728
TAPB = 18432
XB = 28311552
BIG = 0x40000000
PITCH = 9600
W = [TAPB * i for i in range(6)]
A = [110592 + PITCH * i for i in range(5)]
row_slot = {0: A[0], 6: A[1], 1: A[2], 7: A[3], 2: A[4], 8: A[0],
            3: 55296, 9: 55296 + PITCH, 4: 55296 + 2 * PITCH, 10: 55296 + 3 * PITCH, 5: 55296 + 4 * PITCH,
            11: A[2], 12: 0, 13: PITCH}
tap_slot = {t: W[t % 6] for t in range(9)}
LDS = 158592

vLANE = 0
vB0 = 1
vB = 4
vRW = 7
vWW = 12
vT0 = 13
vT = 15
vS4 = 17; vS2 = 18
vTMP = 19
vCV = 20
vF = 28
NS = 13
vACC = vF + 4 * NS
vWT = vACC + 108
assert vWT + 68 == 256
def wreg(t, k, j):
    f = (t * 3 + k) * 3 + j
    if f < 64: return ('a', 4 * f)
    return ('v', vWT + 4 * (f - 64))
def acc(o, b, j):
    return vACC + ((o % 3) * 9 + b * 3 + j) * 4
sX, sWp, sO, sWS = 12, 16, 20, 24
sWAVE, sGRP, sH, sROW, sT0, sT1 = 28, 29, 30, 31, 32, 33
sMROW, sMHALF, sOUT = 34, 36, 38
sWV4608, sW5120 = 39, 40
sTX, sTY = 41, 42
sST = 44

e = Emitter()
nstamp = [0]
PROBE = int(opt('probe', '-1'))
pcount = [0]
def stamp():
    if pcount[0] == PROBE: e('s_memrealtime s[96:97]')
    pcount[0] += 1
    if STAMP:
        e(f's_memrealtime s[{sST+2*nstamp[0]}:{sST+2*nstamp[0]+1}]'); nstamp[0] += 1

hdr = open('standalone__winograd__vision.s.ref').read().split('; Override')[0]
e(hdr.rstrip())
e(f'; @launch grid=(256,1,1) block=(256,1,1) lds={LDS}')
e('.amdgcn_target "amdgcn-amd-amdhsa--gfx950"')
e(f'.text\n.globl {KN}\n.p2align 8\n.type {KN},@function\n{KN}:')
e('s_cmp_ge_u32 s2, 256\ns_cbranch_scc1 Lend')
stamp()
SPIN = int(opt('spin', '0'))
if SPIN: e('s_memrealtime s[90:91]')
e('s_load_dwordx4 s[4:7], s[0:1], 0')
e('s_load_dwordx2 s[8:9], s[0:1], 16')
if STAMP: e('s_load_dwordx2 s[10:11], s[0:1], 32')
e(f'v_lshrrev_b32 v{vTMP}, 6, v0')
e(f'v_and_b32 v0, 63, v0')
e(f'v_readfirstlane_b32 s{sWAVE}, v{vTMP}')
e(f's_and_b32 s{sT0}, s2, 7')
e(f's_lshr_b32 s{sT1}, s2, 3')
e(f's_and_b32 s{sTX}, s{sT1}, 7')
e(f's_lshr_b32 s{sT1}, s{sT1}, 3')
e(f's_lshl_b32 s{sT0}, s{sT0}, 2')
e(f's_add_u32 s{sTY}, s{sT0}, s{sT1}')
e(f's_lshr_b32 s{sGRP}, s{sWAVE}, 1')
e(f's_and_b32 s{sH}, s{sWAVE}, 1')
e(f's_mul_i32 s{sWV4608}, s{sWAVE}, 4608')
e(f's_mul_i32 s{sW5120}, s{sH}, 5120')
e(f'v_lshlrev_b32 v{vWW}, 4, v0')
e(f'v_add_u32 v{vWW}, s{sWV4608}, v{vWW}')
e(f's_mov_b32 s{sMHALF}, -1\ns_mov_b32 s{sMHALF+1}, 0')
e(f's_mov_b32 s{sWp+2}, {9*TAPB}\ns_mov_b32 s{sWp+3}, 0x20000')
GSPIN = int(opt('gspin', '0'))
if GSPIN: e('s_load_dwordx2 s[80:81], s[0:1], 24')
e('s_waitcnt lgkmcnt(0)')
if GSPIN:
    e('s_mov_b32 s82, 256\ns_mov_b32 s83, 0x20000\ns_not_b32 s94, s90\nv_mov_b32 v20, s94\nv_mov_b32 v21, 0')
    e('s_mov_b64 exec, 1\nbuffer_atomic_umax v20, v21, s[80:83], 0 offen\ns_mov_b64 exec, -1\ns_waitcnt vmcnt(0)')
e(f's_mov_b32 s{sWp}, s6\ns_mov_b32 s{sWp+1}, s7')

def selg(d, a, b):
    e(f's_mul_i32 s{d}, s{sGRP}, {b-a}')
    e(f's_add_u32 s{d}, s{d}, {a}')
def dma_tap(t):
    items = []
    def head():
        e(f's_add_u32 m0, s{sWV4608}, {tap_slot[t]}')
        e(f's_mov_b32 s{sT0}, {t*TAPB}')
    items.append((8, head))
    for i in range(4):
        items.append((8, lambda i=i: e.vm(f'buffer_load_dwordx4 v{vWW}, s[{sWp}:{sWp+3}], s{sT0} offen offset:{1024*i} {WF} lds')))
    def mid():
        e(f's_add_u32 m0, m0, 4096')
        e(f's_add_u32 s{sT0}, s{sT0}, 4096')
    items.append((8, mid))
    def last():
        e(f's_mov_b64 exec, s[{sMHALF}:{sMHALF+1}]')
        tok = e.vm(f'buffer_load_dwordx4 v{vWW}, s[{sWp}:{sWp+3}], s{sT0} offen {WF} lds')
        e('s_mov_b64 exec, -1')
        return tok
    items.append((16, last))
    return items

def run(items):
    tok = None
    for c, f in items:
        r = f()
        if r is not None: tok = r
    return tok

tok_tap = {}
tok_tap[0] = run(dma_tap(0))

e(f's_sub_u32 s{sX}, s4, 192\ns_subb_u32 s{sX+1}, s5, 0\ns_mov_b32 s{sX+2}, {XB+192}\ns_mov_b32 s{sX+3}, 0x20000')
e(f's_mov_b32 s{sO}, s8\ns_mov_b32 s{sO+1}, s9\ns_mov_b32 s{sO+2}, {XB}\ns_mov_b32 s{sO+3}, 0x20000')
if STAMP: e(f's_mov_b32 s{sWS}, s10\ns_mov_b32 s{sWS+1}, s11\ns_mov_b32 s{sWS+2}, 0x1000000\ns_mov_b32 s{sWS+3}, 0x20000')
e(f's_mul_i32 s{sOUT}, s{sTY}, {12*ROWB}')
e(f's_mul_i32 s{sT0}, s{sGRP}, {6*ROWB}')
e(f's_add_u32 s{sOUT}, s{sOUT}, s{sT0}')
e(f's_mul_i32 s{sT0}, s{sTX}, {48*192}')
e(f's_add_u32 s{sOUT}, s{sOUT}, s{sT0}')
e(f's_sub_u32 s{sROW}, s{sOUT}, {ROWB}')
e(f's_cmp_eq_u32 s{sH}, 0')
e(f's_cselect_b32 s{sMROW}, -1, 0xffffff')
e(f's_cselect_b32 s{sMROW+1}, -1, 0')
e(f's_mul_i32 s{sT0}, s{sH}, 320')
e(f's_cmp_eq_u32 s{sTX}, 0\ns_cselect_b32 s{sT1}, 12, 0')
e(f's_cmp_eq_u32 s{sTX}, 7\ns_cselect_b32 s3, 588, -1')
e(f's_mov_b32 s4, 1366\ns_mov_b32 s5, {BIG}')
for i in range(5):
    q = vRW + i
    e(f'v_add_u32 v{q}, s{sT0}, v0')
    if i: e(f'v_add_u32 v{q}, {64*i}, v{q}')
    e(f'v_mul_u32_u24 v{vTMP}, s4, v{q}')
    e(f'v_lshrrev_b32 v{vTMP}, 15, v{vTMP}')
    e(f'v_and_b32 v{vTMP}, 2, v{vTMP}')
    if i == 0: e(f'v_cmp_gt_u32 vcc, s{sT1}, v{q}')
    if i == 4: e(f'v_cmp_le_u32 vcc, s3, v{q}')
    e(f'v_xor_b32 v{q}, v{vTMP}, v{q}')
    e(f'v_lshlrev_b32 v{q}, 4, v{q}')
    if 0 < i < 4: e(f'v_subrev_u32 v{q}, {1024*i}, v{q}')
    if i in (0, 4):
        e(f'v_mov_b32 v{vTMP}, s5')
        e(f'v_cndmask_b32 v{q}, v{q}, v{vTMP}, vcc')

def dma_rows(ra, rb):
    items = []
    def head():
        selg(sT0, row_slot[ra], row_slot[rb])
    items.append((8, head))
    def head2():
        e(f's_add_u32 m0, s{sT0}, s{sW5120}')
        if rb - 6 == ra:
            e(f's_add_u32 s{sT1}, s{sROW}, {ra*ROWB}')
        else:
            selg(sT1, ra*ROWB, (rb-6)*ROWB)
            e(f's_add_u32 s{sT1}, s{sT1}, s{sROW}')
        if ra == 0:
            e(f's_or_b32 s{sT0}, s{sTY}, s{sGRP}')
            e(f's_cmp_eq_u32 s{sT0}, 0')
            e(f's_cselect_b32 s{sT1}, {BIG}, s{sT1}')
        if rb == 13:
            e(f's_add_u32 s{sT0}, s{sTY}, s{sGRP}')
            e(f's_cmp_eq_u32 s{sT0}, 32')
            e(f's_cselect_b32 s{sT1}, {BIG}, s{sT1}')
    items.append((8, head2))
    for i in range(4):
        items.append((8, lambda i=i: e.vm(f'buffer_load_dwordx4 v{vRW+i}, s[{sX}:{sX+3}], s{sT1} offen offset:{1024*i} {XF} lds')))
    items.append((4, lambda: e(f's_add_u32 m0, m0, 4096')))
    def last():
        e(f's_mov_b64 exec, s[{sMROW}:{sMROW+1}]')
        tok = e.vm(f'buffer_load_dwordx4 v{vRW+4}, s[{sX}:{sX+3}], s{sT1} offen {XF} lds')
        e('s_mov_b64 exec, -1')
        return tok
    items.append((16, last))
    return items

tok_row = {}
tok_row[0] = run(dma_rows(0, 6))
e(f'v_and_b32 v{vCV}, 15, v0')
e(f'v_lshrrev_b32 v{vCV+1}, 4, v0')
for dx in range(3):
    e(f'v_add_u32 v{vTMP}, {dx}, v{vCV}')
    e(f'v_mul_u32_u24 v{vB0+dx}, 192, v{vTMP}')
    e(f'v_lshrrev_b32 v{vTMP}, 1, v{vTMP}')
    e(f'v_and_b32 v{vTMP}, 2, v{vTMP}')
    e(f'v_xor_b32 v{vTMP}, v{vTMP}, v{vCV+1}')
    e(f'v_lshl_add_u32 v{vB0+dx}, v{vTMP}, 4, v{vB0+dx}')
e(f'v_mul_u32_u24 v{vS4}, 192, v{vCV}')
e(f's_lshl_b32 s{sT0}, s{sH}, 5\ns_add_u32 s{sT0}, s{sT0}, 64')
e(f'v_lshl_add_u32 v{vS2}, v{vCV+1}, 3, v{vS4}')
e(f'v_add_u32 v{vS2}, s{sT0}, v{vS2}')
e(f's_lshl_b32 s{sT1}, s{sH}, 7')
e(f'v_lshl_add_u32 v{vS4}, v{vCV+1}, 4, v{vS4}')
e(f'v_add_u32 v{vS4}, s{sT1}, v{vS4}')
e(f'v_lshrrev_b32 v{vTMP}, 2, v{vCV}')
e(f'v_lshl_add_u32 v{vTMP}, v{vCV+1}, 3, v{vTMP}')
e(f'v_mul_u32_u24 v{vTMP}, 192, v{vTMP}')
e(f'v_and_b32 v{vCV}, 3, v{vCV}')
e(f'v_lshl_add_u32 v{vT0}, v{vCV}, 4, v{vTMP}')
e(f'v_add_u32 v{vT0}, s{sT1}, v{vT0}')
e(f'v_lshl_add_u32 v{vT0+1}, v{vCV}, 3, v{vTMP}')
e(f'v_add_u32 v{vT0+1}, s{sT0}, v{vT0+1}')

groups = []
for dx in range(3):
    for b in range(3): groups.append((0, b, [0], [dx]))
for b in range(3): groups.append((1, b, [0], [0, 1, 2]))
for b in range(3): groups.append((1, b, [1], [0, 1, 2]))
for b in range(3): groups.append((2, b, [1, 0], [0, 1, 2]))
for b in range(3): groups.append((2, b, [2], [0, 1, 2]))
for i in range(3, 8):
    dys = [dy for dy in (2, 1, 0) if 0 <= i - dy <= 5]
    for b in range(3): groups.append((i, b, dys, [0, 1, 2]))

mf = []
frags = []
started = set()
chain_end = {}
gstart = []
for gi, (i, b, dys, dxs) in enumerate(groups):
    gstart.append(len(mf))
    fl = []
    for dx in dxs:
        for k in range(3):
            fl.append(len(frags)); frags.append(dict(i=i, b=b, dx=dx, k=k, first=None, last=None))
    for dy in dys:
        o = i - dy
        for j in range(3):
            for F in fl:
                fr = frags[F]
                first = (o, b, j) not in started
                started.add((o, b, j))
                if fr['first'] is None: fr['first'] = len(mf)
                fr['last'] = len(mf)
                mf.append(dict(acc=acc(o, b, j), t=3*dy+fr['dx'], k=fr['k'], j=j, F=F, first=first))
            chain_end[(o, b, j)] = len(mf) - 1
assert len(mf) == 1458
def gidx(i, b, n=0):
    c = [g for g, x in enumerate(groups) if x[0] == i and x[1] == b]
    return c[n]


from sched import *
tokF = {}; tokW = {}
SB = Stream('bar'); SFr = Stream('frag'); SW = Stream('w'); SD = Stream('dma'); SE = Stream('epi')
done = set()
LEAD = int(opt('lead', '7'))
def add_frag(F, cond=None):
    fr = frags[F]
    mn = frags[F - NS]['last'] + 1 if F >= NS else 0
    def fn():
        d = vF + 4 * (F % NS)
        tokF[F] = e.lds(f'ds_read_b128 {vr(d,4)}, v{vB+fr["dx"]} offset:{fr["b"]*3072+fr["k"]*64}')
    SFr.add(fn, 8, 'l', rel=mn, dl=fr['first'] - LEAD, cond=cond)
def add_rowbase(i, bar):
    SFr.add(lambda: selg(3, row_slot[i], row_slot[i+6]), 8, 's', cond=(lambda: bar in done) if bar else None)
    for dx in range(3):
        SFr.add(lambda dx=dx: e(f'v_add_u32 v{vB+dx}, s3, v{vB0+dx}'), 4, 'v')
wfirst = {}
for m, M in enumerate(mf): wfirst.setdefault((M['t'], M['k'], M['j']), m)
def add_wbase(base, bar):
    SW.add(lambda: e(f'v_add_u32 v{vT}, {base}, v{vT0}'), 4, 'v', cond=lambda: bar in done)
    SW.add(lambda: e(f'v_add_u32 v{vT+1}, {base}, v{vT0+1}'), 4, 'v')
def add_w(t, k, j, base, cond=None):
    p, r = wreg(t, k, j)
    for q in range(2):
        def fn(q=q):
            a = vT if j < 2 else vT + 1
            off = tap_slot[t] - base + (32*k + 4*q) * 192 + (8*j if j < 2 else 0)
            tk = e.lds(f'ds_read_b64_tr_b16 {vr(r+2*q,2,p)}, v{a} offset:{off}')
            if q == 1: tokW[(t, k, j)] = tk
        SW.add(fn, 8, 'l', dl=wfirst[(t, k, j)] - LEAD, cond=cond if q == 0 else None)
def barrier_now(name, vmtok=None, ldstok=None):
    e.need(vm=vmtok, lds=ldstok)
    e('s_barrier'); stamp(); done.add(name)
def add_barrier(name, rel, vm, Fs=(), Ws=()):
    def cond():
        try: vm()
        except KeyError: return False
        return all(F in tokF for F in Fs) and all(w in tokW for w in Ws)
    def fn():
        lt = max([tokF[F] for F in Fs] + [tokW[w] for w in Ws] + [0])
        bar_at[name] = cur[0]
        barrier_now(name, vm(), lt or None)
    SB.add(fn, 8, 's', rel=rel, dl=rel, cond=cond)
bar_at = {}; cur = [0]
def add_dma(items, store, rel, gap, bar=None):
    n = 0
    for i, (c, f) in enumerate(items):
        last = i == len(items) - 1
        isvm = c == 8 and 'lambda' in f.__name__ and i not in (0,) or last
        g = (lambda f=f: store(f())) if last else f
        SD.add(g, 12 if isvm else min(c, 12), 'm' if isvm else 's', rel=rel + n * gap, dl=rel + n * gap + 6, cond=(lambda: bar in done) if (bar and i == 0) else None)
        if isvm: n += 1
    return rel + n * gap
def gfr(g): return [F for F, fr in enumerate(frags) if gstart[g] <= fr['first'] < (gstart[g+1] if g+1 < len(groups) else 1e9)]
def rowfr(i): return [F for F, fr in enumerate(frags) if fr['i'] == i]
def tapw(ts): return [(t, k, j) for t in ts for k in range(3) for j in range(3)]
pstart = {}
for g, x in enumerate(groups): pstart.setdefault(x[0], gstart[g])

tok_tap[1] = run(dma_tap(1))
barrier_now('t0', tok_tap[0])
add_wbase(0, 't0')
for j in range(3):
    for k in range(3): add_w(0, k, j, 0)
while SW.head(): SW.pop(0)
tok_tap[2] = run(dma_tap(2))
barrier_now('r0', tok_row[0])
add_rowbase(0, None)
for F in rowfr(0): add_frag(F)
for _ in range(4 + 6): SFr.pop(0)
G0 = int(opt('g0', '4'))
r = add_dma(dma_rows(1, 7), lambda tk: tok_row.__setitem__(1, tk), 1, G0)
for t in (3, 4, 5): r = add_dma(dma_tap(t), lambda tk, t=t: tok_tap.__setitem__(t, tk), r, G0)
r = add_dma(dma_rows(2, 8), lambda tk: tok_row.__setitem__(2, tk), r, G0, 'B1')
for t in (6, 7, 8): r = add_dma(dma_tap(t), lambda tk, t=t: tok_tap.__setitem__(t, tk), r, G0 + 1)
G1 = int(opt('g1', '20'))
r = add_dma(dma_rows(3, 9), lambda tk: tok_row.__setitem__(3, tk), pstart[2] - 10, G1, 'B2')
r = add_dma(dma_rows(4, 10), lambda tk: tok_row.__setitem__(4, tk), pstart[3] - 60, G1)
r = add_dma(dma_rows(5, 11), lambda tk: tok_row.__setitem__(5, tk), pstart[4] - 60, G1)
r = add_dma(dma_rows(12, 13), lambda tk: tok_row.__setitem__(6, tk), pstart[5] - 60, G1, 'B3')
add_barrier('t1', int(opt('bt1', '2')), lambda: tok_tap[1])
add_barrier('t2', int(opt('bt2', '22')), lambda: tok_tap[2])
add_barrier('B1', pstart[1] - 18, lambda: tok_row[1], rowfr(0), tapw((0, 1, 2)))
add_barrier('t345', int(opt('bt345', '112')), lambda: tok_tap[5])
add_barrier('B2', pstart[2] - 18, lambda: tok_tap[8], rowfr(1), tapw((3, 4, 5)))
add_barrier('B3', pstart[3] - 18, lambda: tok_row[3], rowfr(2), tapw((6, 7, 8)))
for i in (4, 5, 6): add_barrier(f'B{i}', pstart[i] - 40, lambda i=i: tok_row[i])
for t in (1, 2):
    first = True
    for j in range(3):
        for k in range(3):
            add_w(t, k, j, 0, cond=(lambda t=t: f't{t}' in done) if first else None); first = False
for ts, bar in (((3, 4, 5), 't345'), ((6, 7, 8), 'B2')):
    add_wbase(tap_slot[ts[0]], bar)
    for j in range(3):
        for t in ts:
            for k in range(3): add_w(t, k, j, tap_slot[ts[0]])
for i in range(1, 8):
    add_rowbase(i, f'B{i}' if i < 7 else None)
    for F in rowfr(i): add_frag(F)
for o in range(6):
    for b in range(3):
        for j in range(3):
            mn = chain_end[(o, b, j)] + 9
            a = acc(o, b, j); d = vCV + 2 * j
            it = SE.add(lambda a=a, d=d: e(f'v_cvt_pk_bf16_f32 v{d}, v{a}, v{a+1}'), 4, 'v', rel=mn, dl=mn + 12); it['ce'] = chain_end[(o, b, j)]
            SE.add(lambda a=a, d=d: e(f'v_cvt_pk_bf16_f32 v{d+1}, v{a+2}, v{a+3}'), 4, 'v', rel=mn, dl=mn + 12)
            if j == 1:
                SE.add(lambda o=o, b=b: e(f's_add_u32 s43, s{sOUT}, {o*ROWB + b*3072}'), 4, 's', rel=mn, dl=mn + 12)
                SE.add(lambda: e.vm(f'buffer_store_dwordx4 {vr(vCV,4)}, v{vS4}, s[{sO}:{sO+3}], s43 offen {SF}'), 24, 'm', rel=mn, dl=mn + 12)
            if j == 2:
                SE.add(lambda: e.vm(f'buffer_store_dwordx2 {vr(vCV+4,2)}, v{vS2}, s[{sO}:{sO+3}], s43 offen {SF}'), 16, 'm', rel=mn, dl=mn + 12)
streams = [SB, SFr, SW, SD, SE]
SD.urgent = False; SE.urgent = False
for s_ in streams: s_.finalize()
stalls = 0; over = 0
issue_at = {}
for m, M in enumerate(mf):
    cur[0] = m
    F = M['F']; wk = (M['t'], M['k'], M['j'])
    while F not in tokF or wk not in tokW:
        stalls += 1
        st = SFr if F not in tokF else SW
        if st.head()['cond'] and not st.head()['cond']():
            while not SB.head()['cond']():
                if SD.head() and (not SD.head()['cond'] or SD.head()['cond']()): SD.pop(m)
                elif SW.head() and (not SW.head()['cond'] or SW.head()['cond']()): SW.pop(m)
                else: SFr.pop(m)
            SB.pop(m)
        else: st.pop(m)
    w = e.need(lds=max(tokF[F], tokW[wk]))
    p, r = wreg(*wk); a = M['acc']; f = vF + 4 * (F % NS)
    e(f'v_mfma_f32_16x16x32_bf16 {vr(a,4)}, {vr(r,4,p)}, {vr(f,4)}, {"0" if M["first"] else vr(a,4)}')
    budget = 12
    if m + 1 < len(mf):
        N = mf[m+1]; nk = (N['t'], N['k'], N['j'])
        if N['F'] in tokF and nk in tokW and max(tokF[N['F']], tokW[nk]) > e.lds_done: budget -= 4
    u = fill_gap(streams, m, budget); over += max(0, u - budget)
for s_ in (SB, SFr, SW, SD): assert s_.head() is None, s_.name
sys.stderr.write(f'est overflow cycles {over}\n')
sys.stderr.write(f'barriers at {bar_at} pstart {pstart}\n')
S3 = [[it['rel'], it['cost'], it['fn'], it.get('ce')] for it in SE.items]; p3 = SE.p
stamp()
while p3 < len(S3):
    it = S3[p3]
    if it[3] is not None and it[3] > len(mf) - 9 and not getattr(e, 'padded', False):
        e('s_nop 7'); e.padded = True
    it[2](); p3 += 1
sys.stderr.write(f'forced flushes: {stalls}\n')
if STAMP:
    e('s_waitcnt vmcnt(0)')
    stamp()
    e('s_waitcnt lgkmcnt(0)')
    e(f's_lshl_b32 s3, s2, 2\ns_add_u32 s3, s3, s{sWAVE}\ns_lshl_b32 s3, s3, 8')
    e(f'v_mov_b32 v1, s3')
    for i in range(2 * nstamp[0]):
        e(f'v_mov_b32 v2, s{sST+i}\nbuffer_store_dword v2, v1, s[{sWS}:{sWS+3}], 0 offen offset:{4*i}')
    sys.stderr.write(f'nstamp {nstamp[0]}\n')
if SPIN:
    e('s_waitcnt vmcnt(0) lgkmcnt(0)')
    if GSPIN:
        e('v_mov_b32 v21, 0\nbuffer_load_dword v20, v21, s[80:83], 0 offen sc0 sc1\ns_waitcnt vmcnt(0)\nv_readfirstlane_b32 s90, v20\ns_not_b32 s90, s90')
    if PROBE >= 0:
        e('s_sub_u32 s96, s96, s90\ns_lshl_b32 s96, s96, 2\ns_add_u32 s90, s90, s96')
    e(f's_add_u32 s90, s90, {SPIN*100}')
    e('Lspin:\ns_memrealtime s[92:93]\ns_waitcnt lgkmcnt(0)\ns_sub_u32 s92, s92, s90\ns_cmp_lt_i32 s92, 0\ns_cbranch_scc1 Lspin')
e('Lend:\ns_endpgm')
e(f'''.section .rodata,"a"
.p2align 6
.amdhsa_kernel {KN}
  .amdhsa_next_free_vgpr 512
  .amdhsa_next_free_sgpr 102
  .amdhsa_accum_offset 256
  .amdhsa_group_segment_fixed_size 0
  .amdhsa_kernarg_size 40
  .amdhsa_user_sgpr_count 2
  .amdhsa_user_sgpr_kernarg_segment_ptr 1
  .amdhsa_system_sgpr_workgroup_id_x 1
.end_amdhsa_kernel''')
sys.stdout.write(e.text())
```
